```python
import torch

def _softmax(x, axis=-1):
    return torch.softmax(x, dim=axis)
def _gelu(x):
    return torch.nn.functional.gelu(x, approximate="tanh")
def _silu(x):
    return torch.nn.functional.silu(x)
def _sigmoid(x):
    return torch.sigmoid(x)
def _layernorm(x, axis=-1, eps=1e-5):
    m = x.mean(dim=axis, keepdim=True)
    v = x.var(dim=axis, keepdim=True, unbiased=False)
    return (x - m) / torch.sqrt(v + eps)
def _scatter_add(tgt, idx, src, axis=0):
    return tgt.clone().index_add_(axis, idx, src)
def _segment_sum(src, seg, n):
    out = torch.zeros((n,) + src.shape[1:], dtype=src.dtype)
    return out.index_add_(0, seg, src)
def _pad(x, pw):
    flat = tuple(v for pair in reversed(pw) for v in pair)
    return torch.nn.functional.pad(x, flat)

kernel_name = 'interleave_layers__linear_attn_block__grouped_kv_mqa__prompt'

def setup_inputs():

    _w = (lambda a: (lambda t: t.to(torch.bfloat16) if t.is_floating_point() else t)(torch.as_tensor(a)))
    def _A_setup():
        B, S, D = 1, 2048, 640
        return {
            "x": _w((lambda *s: torch.randn(*s, dtype=torch.bfloat16) * 0.05)(B, S, D)),
            "wqkv": _w((lambda *s: torch.randn(*s, dtype=torch.bfloat16) * 0.1)(D, 3 * D)),
            "wo": _w((lambda *s: torch.randn(*s, dtype=torch.bfloat16) * 0.05)(D, D)),
        }
    _A_in = _A_setup()

    def _B_setup():
        B, S, D, H = 1, 2048, 640, 32
        Dh = D // H
        return {
            "x": _w((lambda *s: torch.randn(*s, dtype=torch.bfloat16) * 0.05)(B, S, D)),
            "wq": _w((lambda *s: torch.randn(*s, dtype=torch.bfloat16) * 0.1)(D, H * Dh)),
            "wk": _w((lambda *s: torch.randn(*s, dtype=torch.bfloat16) * 0.1)(D, Dh)),
            "wv": _w((lambda *s: torch.randn(*s, dtype=torch.bfloat16) * 0.05)(D, Dh)),
            "wo": _w((lambda *s: torch.randn(*s, dtype=torch.bfloat16) * 0.05)(H * Dh, D)),
        }
    _B_in = _B_setup()

    return {
        "A_x": _A_in["x"],
        "A_wqkv": _A_in["wqkv"],
        "A_wo": _A_in["wo"],
        "B_x": _B_in["x"],
        "B_wq": _B_in["wq"],
        "B_wk": _B_in["wk"],
        "B_wv": _B_in["wv"],
        "B_wo": _B_in["wo"],
    }

def reference(A_x, A_wqkv, A_wo, B_x, B_wq, B_wk, B_wv, B_wo):
    def _A_ref(x, wqkv, wo):
        B, S, D = x.shape
        H = 32; Dh = D // H
        qkv = (lambda x, *d: x.permute(*d))((x @ wqkv).reshape(B, S, 3, H, Dh), 2, 0, 3, 1, 4)
        q, k, v = qkv[0], qkv[1], qkv[2]
        phi = lambda t: torch.where(t > 0, t + 1, torch.exp(t)) + 1e-6
        pq, pk = phi(q), phi(k)
        kv = torch.einsum("bhsd,bhse->bhde", pk, v)
        z = torch.einsum("bhsd->bhd", pk)
        num = torch.einsum("bhqd,bhde->bhqe", pq, kv)
        den = torch.einsum("bhqd,bhd->bhq", pq, z)[..., None] + 1e-6
        o = num / den
        return (lambda x, *d: x.permute(*d))(o, 0, 2, 1, 3).reshape(B, S, D) @ wo

    def _B_ref(x, wq, wk, wv, wo):
        B, S, D = x.shape
        H = 32
        Dh = D // H
        q = (lambda x, *d: x.permute(*d))((x @ wq).reshape(B, S, H, Dh), 0, 2, 1, 3)
        k = x @ wk
        v = x @ wv
        scores = torch.einsum("bhqd,bkd->bhqk", q, k) * (Dh ** -0.5)
        p = _softmax(scores, axis=-1)
        o = torch.einsum("bhqk,bkd->bhqd", p, v)
        return (lambda x, *d: x.permute(*d))(o, 0, 2, 1, 3).reshape(B, S, H * Dh) @ wo

    x = A_x
    x = x + _A_ref(_layernorm(x, axis=-1), A_wqkv, A_wo)
    x = x + _B_ref(_layernorm(x, axis=-1), B_wq, B_wk, B_wv, B_wo)
    x = x + _A_ref(_layernorm(x, axis=-1), A_wqkv, A_wo)
    x = x + _B_ref(_layernorm(x, axis=-1), B_wq, B_wk, B_wv, B_wo)
    return x
```

```python
import re

class Asm:
    def __init__(self):
        self.lines = []
        self.uid = 0
    def __call__(self, s):
        for ln in s.split("\n"):
            ln = ln.strip()
            if ln: self.lines.append(ln)
    def label(self, name):
        self.lines.append(name + ":")
    def newlabel(self, base="L"):
        self.uid += 1
        return f"{base}_{self.uid}"
    def c(self, s):
        self.lines.append("; " + s)

REG_RE = re.compile(r'(?<![\w.])(-?\|?)([vas])(?:(\d+)|\[(\d+):(\d+)\])')
def regs_of(op):
    op = op.strip()
    out = []
    if op in ("vcc",): return [("s", 106), ("s", 107)]
    if op == "vcc_lo": return [("s",106)]
    if op == "vcc_hi": return [("s",107)]
    if op == "exec": return [("s",126),("s",127)]
    if op == "m0": return [("s",124)]
    m = re.fullmatch(r'-?\|?(?:abs\()?([vas])(?:(\d+)|\[(\d+):(\d+)\])\)?\|?', op)
    if m:
        k = m.group(1)
        if m.group(2) is not None: return [(k, int(m.group(2)))]
        return [(k, i) for i in range(int(m.group(3)), int(m.group(4)) + 1)]
    return out

TRANS = ("v_exp_f32","v_log_f32","v_rcp_f32","v_rsq_f32","v_sqrt_f32","v_sin_f32","v_cos_f32","v_exp_f16","v_rcp_iflag_f32")

class Ins:
    pass

def parse(line):
    I = Ins(); I.text = line
    I.kind = None; I.dst = []; I.src = []; I.mn = None
    if line.startswith(";"): I.kind = "comment"; return I
    if line.startswith("."): I.kind = "directive"; return I
    if line.endswith(":"): I.kind = "label"; I.name = line[:-1]; return I
    body = line.split(";")[0].strip()
    parts = body.split(None, 1)
    mn = parts[0]; I.mn = mn
    rest = parts[1] if len(parts) > 1 else ""
    ops = []; depth = 0; cur = ""
    for ch in rest:
        if ch == "[": depth += 1
        if ch == "]": depth -= 1
        if ch == "," and depth == 0: ops.append(cur.strip()); cur = ""
        else: cur += ch
    if cur.strip(): ops.append(cur.strip())
    mods = ""
    if ops:
        sp = ops[-1].split(None, 1)
        if len(sp) > 1 and not sp[0].startswith("vmcnt") and not sp[0].startswith("lgkmcnt"):
            ops[-1] = sp[0]; mods = sp[1]
    I.ops = ops; I.mods = mods
    base = re.sub(r'_(e32|e64|dpp|sdwa)$', '', mn)
    I.base = base
    R = [regs_of(o) for o in ops]
    if mn.startswith("v_mfma"):
        I.kind = "mfma"; I.dst = R[0]; I.A = R[1]; I.B = R[2]; I.C = R[3]; I.src = R[1] + R[2] + R[3]
        I.passes = 8 if "32x32" in mn else 4
    elif mn.startswith("v_"):
        I.kind = "valu"
        I.trans = base in TRANS
        I.dpp = ("dpp" in mn) or ("row_" in mods) or ("quad_perm" in mods)
        I.perm = base.startswith("v_permlane")
        I.rdlane = base in ("v_readfirstlane_b32", "v_readlane_b32")
        if base.startswith("v_cmp"):
            I.dst = R[0]; I.src = sum(R[1:], [])
        elif I.perm:
            I.dst = R[0] + R[1]; I.src = R[0] + R[1]
        elif base in ("v_add_co_u32","v_sub_co_u32","v_addc_co_u32","v_subb_co_u32"):
            I.dst = R[0] + R[1]; I.src = sum(R[2:], [])
        else:
            I.dst = R[0]; I.src = sum(R[1:], [])
            if base in ("v_fmac_f32","v_pk_fmac_f16","v_writelane_b32") or "UNUSED_PRESERVE" in mods or I.dpp:
                I.src = I.src + R[0]
        if base == "v_nop": I.dst = []; I.src = []
    elif mn.startswith("ds_"):
        I.kind = "ds"
        if mn.startswith("ds_read") or mn.startswith("ds_bpermute") or mn.startswith("ds_swizzle") or mn.startswith("ds_permute"):
            I.dst = R[0]; I.src = sum(R[1:], [])
        else:
            I.src = sum(R, [])
    elif mn.startswith("buffer_") or mn.startswith("global_"):
        I.kind = "vmem"
        I.lds = bool(re.search(r'\blds\b', mods))
        I.wide = False
        if mn in ("buffer_inv", "buffer_wbl2"):
            pass
        elif "load" in mn and not I.lds:
            I.dst = R[0]; I.src = sum(R[1:], [])
        elif "load" in mn and I.lds:
            I.src = sum(R, []) + [("s",124)]
        elif "atomic" in mn:
            I.src = sum(R, [])
            if "sc0" in mods: I.dst = R[0]
        else:
            I.src = sum(R, []); I.data = R[0]
            I.wide = mn.endswith("x4") or mn.endswith("x3")
    elif mn.startswith("s_"):
        I.kind = "salu"
        if mn in ("s_nop",): I.kind = "nop"; I.n = int(ops[0], 0) + 1
        elif mn == "s_waitcnt": I.kind = "wait"; I.body = rest
        elif mn.startswith("s_cbranch") or mn == "s_branch": I.kind = "branch"; I.target = ops[0]
        elif mn in ("s_endpgm",): I.kind = "end"
        elif mn in ("s_barrier","s_sleep","s_setprio"): pass
        elif mn.startswith("s_cmp") or mn.startswith("s_bitcmp"): I.src = sum(R, [])
        elif mn.startswith("s_load") or mn in ("s_memtime","s_memrealtime"):
            I.kind = "smem"; I.dst = R[0]; I.src = sum(R[1:], [])
        else:
            I.dst = R[0]; I.src = sum(R[1:], [])
            if "saveexec" in mn: I.dst = I.dst + [("s",126),("s",127)]
    else:
        raise ValueError("cannot parse: " + line)
    return I

CAP = 24
def need_states(I, st):
    need = 0
    def chk(tag, regs, n):
        nonlocal need
        for r in regs:
            a = st.get((tag, r))
            if a is not None and a < n: need = max(need, n - a)
    if I.kind == "mfma":
        chk("valuw", I.src, 2)
        for p, n in ((4, 8), (8, 12)):
            chk(f"mfw{p}", I.A + I.B, n)
        for p, n in ((4, 6), (8, 10)):
            for r in I.C + I.dst:
                a = st.get((f"mfw{p}", r))
                if a is not None and a < n:
                    if st.get(("mfd", r)) == (tuple(I.C), ) + (I.passes,) and I.C == I.dst and p == I.passes: continue
                    if st.get(("mfd", r)) == (tuple(I.C), ) + (I.passes,) and p == I.passes and r in I.C: continue
                    need = max(need, n - a)
    elif I.kind == "valu":
        for p, n in ((4, 8), (8, 12)):
            chk(f"mfw{p}", I.src + I.dst, n)
        for p, n in ((4, 3), (8, 7)):
            chk(f"mfc{p}", I.dst, n)
        if not I.trans: chk("transw", I.src, 1)
        chk("valusw", [r for r in I.src if r[0] == "s"], 4 if I.base in ("v_readlane_b32","v_writelane_b32") else 2)
        if I.rdlane: chk("valuw", I.src, 1)
        if I.perm or I.dpp: chk("valuw", I.src, 2)
        chk("widest", I.dst, 2)
    elif I.kind in ("ds", "vmem"):
        for p, n in ((4, 8), (8, 12)):
            chk(f"mfw{p}", I.src + I.dst, n)
        if I.kind == "vmem":
            chk("valusw", [r for r in I.src if r[0] == "s"], 5)
            if I.lds: chk("m0w", [("s",124)], 1)
        chk("widest", I.dst, 1)
    return need

def advance(I, st, states):
    new = {}
    for k, a in st.items():
        if k[0] == "mfd": new[k] = a; continue
        a2 = a + states
        if a2 < CAP: new[k] = a2
    st = new
    if I is None: return st
    if I.kind == "mfma":
        for r in I.dst:
            for p in (4, 8): st.pop((f"mfw{p}", r), None)
            st[(f"mfw{I.passes}", r)] = 0
            st[("mfd", r)] = (tuple(I.dst), I.passes)
            st.pop(("valuw", r), None)
        for r in I.C: st[(f"mfc{I.passes}", r)] = 0
    elif I.kind == "valu":
        for r in I.dst:
            if r[0] == "s": st[("valusw", r)] = 0
            else:
                st[("valuw", r)] = 0
                if I.trans: st[("transw", r)] = 0
                else: st.pop(("transw", r), None)
    elif I.kind == "vmem" and getattr(I, "wide", False):
        for r in I.data: st[("widest", r)] = 0
    elif I.kind == "salu":
        for r in I.dst:
            if r == ("s",124): st[("m0w", r)] = 0
            st.pop(("valusw", r), None)
    return st

def merge(a, b):
    if a is None: return dict(b)
    out = dict(a)
    for k, v in b.items():
        if k[0] == "mfd":
            if out.get(k) != v: out[k] = None
            continue
        if k not in out or v < out[k]: out[k] = v
    for k in list(out):
        if k[0] == "mfd" and k not in b: out[k] = None
    return out

def insert_nops(lines):
    ins = [parse(l) for l in lines]
    for it in range(50):
        labels = {I.name: i for i, I in enumerate(ins) if I.kind == "label"}
        instate = {0: {}}
        work = [0]
        seen_need = {}
        while work:
            i = work.pop()
            st = dict(instate[i])
            while i < len(ins):
                I = ins[i]
                if I.kind in ("comment", "directive"): i += 1; continue
                if I.kind == "label":
                    if i in instate and instate[i] is not st:
                        m = merge(instate.get(i), st)
                        if ("visited", i) in seen_need and m == instate[i]: break
                        instate[i] = m; st = dict(m)
                    else:
                        instate[i] = dict(st)
                    seen_need[("visited", i)] = True
                    i += 1; continue
                n = need_states(I, st)
                if n > 0:
                    seen_need[i] = max(seen_need.get(i, 0), n)
                    st = advance(None, st, n)
                st = advance(I, st, I.n if I.kind == "nop" else 1) if I.kind != "nop" else advance(None, st, I.n)
                if I.kind != "nop":
                    pass
                if I.kind == "end": break
                if I.kind == "branch":
                    t = labels[I.target]
                    m = merge(instate.get(t), st)
                    if ("visited", t) not in seen_need or m != instate.get(t):
                        instate[t] = m
                        seen_need.pop(("visited", t), None)
                        work.append(t)
                    if I.mn == "s_branch": break
                i += 1
        needs = {k: v for k, v in seen_need.items() if isinstance(k, int)}
        if not needs: break
        new = []
        for i, I in enumerate(ins):
            if i in needs:
                n = needs[i]
                while n > 0:
                    k = min(n, 16); new.append(parse(f"s_nop {k-1}")); n -= k
            new.append(I)
        ins = new
    return [I.text for I in ins]

def check_waits(lines, verbose=True):
    vm = []; lg = []
    errs = []
    for ln, l in enumerate(lines):
        I = parse(l)
        if I.kind in ("comment","directive","label","nop"): continue
        if I.kind == "end": vm = []; lg = []; continue
        if I.kind == "wait":
            m = re.search(r'vmcnt\((\d+)\)', I.body)
            if m:
                n = int(m.group(1))
                while len(vm) > n: vm.pop(0)
            m = re.search(r'lgkmcnt\((\d+)\)', I.body)
            if m:
                n = int(m.group(1))
                if any(k == "smem" for k, _ in lg) and n > 0: pass
                else:
                    while len(lg) > n: lg.pop(0)
            continue
        touched = set(I.src) | set(I.dst)
        for q, nm in ((vm, "vm"), (lg, "lgkm")):
            for k, (kind, dst) in enumerate(q):
                ov = touched & set(dst)
                if ov and not (I.kind == "vmem" and nm == "vm" and not (set(I.src) & set(dst))) and not (I.kind == "ds" and nm == "lgkm" and kind == "ds" and not (set(I.src) & set(dst))):
                    errs.append(f"line {ln}: '{l}' touches {sorted(ov)[:4]} pending on {nm}[{k} of {len(q)}]")
        if I.kind == "vmem":
            vm.append(("vm", I.dst))
            if len(vm) > 63: errs.append(f"line {ln}: vmcnt overflow ({len(vm)})") if False else None
        elif I.kind == "ds": lg.append(("ds", I.dst))
        elif I.kind == "smem": lg.append(("smem", I.dst))
    return errs
```

```python
import sys, struct
from asmlib import *

NAME = "interleave_layers__linear_attn_block__grouped_kv_mqa__prompt"
def f2u(x): return struct.unpack("<I", struct.pack("<f", x))[0]

F0A, F0B = 0x400, 0x1400
WF1, WF3, WFQ, WF6, WFK, WFV = 0x100000, 0x400000, 0x500000, 0x600000, 0x700000, 0x710000
STAMP = 0x800000
LSZ = 0x1000000
F1, F2, F3, F4, F5, F6 = 0x0, 0x1000, 0x3000, 0x7000, 0x8000, 0xC000
KP, OA, X1F, ST1, KF1, KF2, VF, OB, X2F, ST2 = 0x10000, 0x100000, 0x380000, 0x600000, 0x620000, 0x630000, 0x640000, 0x680000, 0x900000, 0xB80000
L_WKV = 102400
L_KVS = 133120
L_Q = 133120
L_CSX1 = 154624
L_CSX4 = 156672
L_KVB = 157952
L_VST = 159648
L_FLG = 160160
L_MX = 160256
LDS_BYTES = 163840
POLL_LIMIT = 1 << 21

WS, SX, SO, SW = "s[4:7]", "s[8:11]", "s[12:15]", "s[16:19]"
NONCE = "s[20:21]"
sW, sRB, sCB, sRB2, sHP, sLAY, sLO = "s22", "s23", "s24", "s25", "s26", "s27", "s28"
sRG = "s29"
sWG = "s30"
sLOG2E = "s[32:33]"
sMA = "s[34:35]"
sCNT = "s36"
sT = [f"s{40+i}" for i in range(16)]
sTYPE, sFLAG = "s56", "s57"
vL, vL16, vM, vG = "v0", "v1", "v2", "v3"

class Gen:
    def __init__(self, stop=None, stamps=False):
        self.a = Asm(); self.stop = stop; self.stamps = stamps; self.nstamp = 0

    def stamp(self, name):
        if not self.stamps: return
        a = self.a; i = self.nstamp; self.nstamp += 1
        self.stampnames = getattr(self, "stampnames", []) + [name]
        a(f"s_memtime s[60:61]\ns_waitcnt lgkmcnt(0)")
        a(f"s_cmp_eq_u32 {sLAY}, 0\ns_cselect_b32 s62, {i}, {i+32}")
        a(f"s_mov_b32 m0, s62\nv_writelane_b32 v255, s60, m0")

    def stop_at(self, name):
        if self.stop == name:
            self.a(f"s_branch L_end")
        if self.stop == name + "2":
            self.a(f"s_cmp_eq_u32 {sLAY}, 1\ns_cbranch_scc1 L_end")

    def setexec(self, lo, hi):
        a = self.a
        if lo == 0xffffffff and hi == 0xffffffff: a("s_mov_b64 exec, -1")
        elif hi == 0 and lo <= 64: a(f"s_mov_b64 exec, {lo}")
        else: a(f"s_mov_b32 exec_lo, {lo:#x}\ns_mov_b32 exec_hi, {hi:#x}")
    def full(self): self.a("s_mov_b64 exec, -1")

    def poll(self, vaddr, soff, lo, hi, tmp="v[4:5]"):
        a = self.a; L = a.newlabel("L_poll")
        self.setexec(lo, hi)
        a(f"s_mov_b32 {sCNT}, 0")
        a.label(L)
        a(f"""buffer_load_dwordx2 {tmp}, {vaddr}, {WS}, {soff} offen sc1
        s_add_u32 {sCNT}, {sCNT}, 1
        s_cmp_gt_u32 {sCNT}, {POLL_LIMIT}
        s_cbranch_scc1 L_abort
        s_waitcnt vmcnt(0)
        v_cmp_ne_u64 vcc, {NONCE}, {tmp}
        s_cbranch_vccnz {L}""")
        self.full()

    def flag(self, soff, vz="v6", tmp="v[4:5]"):
        a = self.a
        a(f"""s_mov_b64 exec, 1
        v_mov_b32 {vz}, 0
        v_mov_b32 v4, s20
        v_mov_b32 v5, s21
        buffer_store_dwordx2 {tmp}, {vz}, {WS}, {soff} offen sc1
        s_mov_b64 exec, -1""")

    def dma_linear(self, n, s_lds, s_glob):
        a = self.a
        for j in range(n):
            if j % 4 == 0:
                if j: a(f"s_add_u32 {s_lds}, {s_lds}, 4096\ns_add_u32 {s_glob}, {s_glob}, 4096")
                a(f"s_mov_b32 m0, {s_lds}")
            a(f"buffer_load_dwordx4 {vL16}, {WS}, {s_glob} offen offset:{1024*(j%4)} sc1 lds")

    def prologue(self):
        a = self.a
        a(f"""s_cmp_ge_u32 s2, 256
        s_cbranch_scc1 L_abort
        s_load_dwordx16 s[64:79], s[0:1], 0
        s_load_dwordx4 s[80:83], s[0:1], 64
        s_load_dwordx2 s[84:85], s[0:1], 80
        v_lshrrev_b32 v1, 6, v0
        v_and_b32 v0, 63, v0
        s_mov_b32 {sWG}, s2
        v_readfirstlane_b32 {sW}, v1
        v_lshlrev_b32 {vL16}, 4, v0
        v_and_b32 {vM}, 15, v0
        v_lshrrev_b32 {vG}, 4, v0
        s_and_b32 s40, s2, 7
        s_lshr_b32 s41, s2, 3
        s_lshl_b32 {sRB}, s40, 2
        s_lshr_b32 s42, s41, 3
        s_add_u32 {sRB}, {sRB}, s42
        s_and_b32 {sCB}, s41, 7
        s_lshl_b32 {sRB2}, s40, 1
        s_lshr_b32 s42, s41, 4
        s_add_u32 {sRB2}, {sRB2}, s42
        s_and_b32 {sHP}, s41, 15
        s_lshl_b32 {sRG}, {sRB}, 2
        s_add_u32 {sRG}, {sRG}, {sW}
        s_mov_b32 {sLAY}, 0
        s_mov_b32 {sLO}, {LSZ}
        s_mov_b32 s32, {f2u(1.4426950408889634):#x}
        s_mov_b32 s33, {f2u(1.4426950408889634):#x}
        s_waitcnt lgkmcnt(0)
        s_load_dwordx2 {NONCE}, s[84:85], 0
        s_mov_b32 s4, s84
        s_mov_b32 s5, s85
        s_mov_b32 s6, 0x10000000
        s_mov_b32 s7, 0x00020000
        s_mov_b32 s8, s64
        s_mov_b32 s9, s65
        s_mov_b32 s10, 2621440
        s_mov_b32 s11, 0x00020000
        s_mov_b32 s12, s80
        s_mov_b32 s13, s81
        s_mov_b32 s14, 2621440
        s_mov_b32 s15, 0x00020000
        s_mov_b32 s19, 0x00020000""")
        if self.stamps: a("v_mov_b32 v255, 0")

    def xloads_L1(self, s0, s1):
        a = self.a
        for s in range(s0, s1):
            for mt in range(2):
                r = (mt*20 + s)*4
                a(f"buffer_load_dwordx4 a[{r}:{r+3}], v{10+mt}, {SX}, 0 offen offset:{64*s}")

    def prep(self):
        a = self.a
        sU, sS, sKB, sC1, sC2, sC3, sCOL, sDST, sPB, sX = "s40","s41","s42","s43","s44","s45","s46","s47","s48","s49"
        a.c("---- prep: weight re-layout into MFMA fragments ----")
        a(f"""s_lshl_b32 {sU}, {sW}, 8
        s_add_u32 {sU}, {sU}, {sWG}
        s_lshl_b32 {sPB}, {sW}, 13
        s_add_u32 {sPB}, {sPB}, 8192
        s_mov_b32 {sFLAG}, 0
        s_mov_b32 {sC1}, 8
        s_mov_b32 {sC2}, 16
        s_mov_b32 {sC3}, 4
        s_lshl_b32 s50, {sRB2}, 7
        s_lshl_b32 s51, {sW}, 5
        s_add_u32 s50, s50, s51
        v_add_u32 v10, s50, {vM}
        v_mul_u32_u24 v10, 1280, v10
        v_lshl_add_u32 v10, {vG}, 4, v10
        v_add_u32 v11, {16*1280}, v10
        v_lshrrev_b32 v12, 1, {vL}
        v_and_b32 v13, 3, v12          ; r
        v_bfe_u32 v14, v12, 2, 1       ; g1
        v_bfe_u32 v15, v12, 3, 1       ; g2
        v_lshrrev_b32 v16, 4, v12      ; hf
        v_and_b32 v17, 1, {vL}         ; ch
        s_cmp_lt_u32 {sU}, 320
        s_cbranch_scc1 L_pA
        s_cmp_lt_u32 {sU}, 800
        s_cbranch_scc1 L_pB
        s_cmp_lt_u32 {sU}, 840
        s_cbranch_scc1 L_pE
        s_mov_b32 {sTYPE}, 3
        s_branch L_pJ1""")
        def kcalc():
            a(f"""v_add_u32 v18, {sKB}, v13
            v_mad_u32_u24 v18, v14, {sC1}, v18
            v_mad_u32_u24 v18, v15, {sC2}, v18
            v_mad_u32_u24 v18, v16, {sC3}, v18""")
        a.label("L_pA")
        a(f"""s_mov_b32 {sTYPE}, 0
        s_lshr_b32 {sS}, {sU}, 4
        s_and_b32 {sX}, {sU}, 15
        s_lshl_b32 {sKB}, {sS}, 5
        s_mul_i32 {sCOL}, {sX}, 80
        s_mul_i32 {sDST}, {sX}, 153600
        s_mul_i32 s50, {sS}, 7680
        s_add_u32 {sDST}, {sDST}, s50
        s_add_u32 {sDST}, {sDST}, {WF1}
        s_lshl_b32 {sFLAG}, {sX}, 8
        s_lshl_b32 s50, {sS}, 3
        s_add_u32 {sFLAG}, {sFLAG}, s50
        s_add_u32 {sFLAG}, {sFLAG}, {F0A}
        s_mov_b32 s16, s66
        s_mov_b32 s17, s67
        s_mov_b32 s18, 2457600""")
        kcalc()
        a(f"""v_mul_u32_u24 v18, 3840, v18
        v_lshl_add_u32 v19, v17, 4, v18
        v_mul_u32_u24 v20, 1280, v17
        v_add_u32 v20, v20, v18
        v_lshl_add_u32 v21, v17, 5, v18""")
        for b, (vo, imm) in enumerate((("v19",0),("v19",40),("v19",1280),("v19",1312),("v20",1344),("v19",2560),("v19",2592),("v21",32))):
            d = 1024*b - imm
            a(f"s_add_u32 m0, {sPB}, {d}" if d >= 0 else f"s_sub_u32 m0, {sPB}, {-d}")
            a(f"buffer_load_dwordx4 {vo}, {SW}, {sCOL} offen offset:{imm} lds")
        a("s_branch L_pJ1")
        a.label("L_pB")
        a(f"""s_mov_b32 {sTYPE}, 1
        s_sub_u32 {sU}, {sU}, 320
        s_mov_b32 s18, 819200
        s_cmp_lt_u32 {sU}, 160
        s_cbranch_scc1 L_pB0
        s_cmp_lt_u32 {sU}, 320
        s_cbranch_scc1 L_pB1
        s_sub_u32 {sU}, {sU}, 320
        s_mov_b32 s16, s78
        s_mov_b32 s17, s79
        s_mov_b32 {sDST}, {WF6}
        s_lshr_b32 {sS}, {sU}, 3
        s_mul_i32 s50, {sS}, 52
        s_lshr_b32 s50, s50, 8          ; u = s/5
        s_mul_i32 s51, s50, 5
        s_sub_u32 s51, {sS}, s51        ; t = s%5
        s_mul_i32 {sKB}, s50, 160
        s_mov_b32 {sC1}, 20
        s_cmp_eq_u32 s51, 2
        s_cbranch_scc1 L_pD2
        s_cmp_gt_u32 s51, 2
        s_cselect_b32 s52, 1, 0
        s_sub_u32 s51, s51, s52         ; t in 0..3 -> 40*t
        s_mul_i32 s51, s51, 40
        s_add_u32 {sKB}, {sKB}, s51
        s_mov_b32 {sC2}, 4
        s_mov_b32 {sC3}, 8
        s_branch L_pBc""")
        a.label("L_pD2")
        a(f"""s_add_u32 {sKB}, {sKB}, 16
        s_mov_b32 {sC2}, 80
        s_mov_b32 {sC3}, 40
        s_branch L_pBc""")
        a.label("L_pB1")
        a(f"""s_sub_u32 {sU}, {sU}, 160
        s_mov_b32 s16, s72
        s_mov_b32 s17, s73
        s_mov_b32 {sDST}, {WFQ}
        s_lshr_b32 {sS}, {sU}, 3
        s_lshl_b32 {sKB}, {sS}, 5
        s_branch L_pBc""")
        a.label("L_pB0")
        a(f"""s_mov_b32 s16, s68
        s_mov_b32 s17, s69
        s_mov_b32 {sDST}, {WF3}
        s_lshr_b32 {sS}, {sU}, 3
        s_and_b32 s50, {sU}, 7
        s_lshl_b32 {sFLAG}, s50, 8
        s_lshl_b32 s50, {sS}, 3
        s_add_u32 {sFLAG}, {sFLAG}, s50
        s_add_u32 {sFLAG}, {sFLAG}, {F0B}
        s_mov_b32 {sC3}, 20
        s_cmp_lt_u32 {sS}, 16
        s_cbranch_scc1 L_pB0a
        s_sub_u32 s50, {sS}, 16
        s_mul_i32 {sKB}, s50, 160
        s_add_u32 {sKB}, {sKB}, 16
        s_mov_b32 {sC1}, 40
        s_mov_b32 {sC2}, 80
        s_branch L_pBc""")
        a.label("L_pB0a")
        a(f"""s_mul_i32 {sKB}, {sS}, 40
        s_mov_b32 {sC1}, 4
        s_mov_b32 {sC2}, 8""")
        a.label("L_pBc")
        a(f"""s_and_b32 {sX}, {sU}, 7
        s_mul_i32 s50, {sX}, 102400
        s_add_u32 {sDST}, {sDST}, s50
        s_mul_i32 s50, {sS}, 5120
        s_add_u32 {sDST}, {sDST}, s50
        s_mul_i32 {sCOL}, {sX}, 160
        s_and_b32 s50, {sX}, 1
        s_cmp_eq_u32 s50, 1
        s_cselect_b32 s51, 0, 128
        s_add_u32 s51, s51, {sCOL}
        s_lshl_b32 s50, s50, 5
        s_add_u32 {sCOL}, {sCOL}, s50""")
        kcalc()
        a(f"""v_mul_u32_u24 v18, 1280, v18
        v_lshl_add_u32 v19, v17, 4, v18""")
        for b in range(4):
            a(f"s_add_u32 m0, {sPB}, {992*b}")
            a(f"buffer_load_dwordx4 v19, {SW}, {sCOL} offen offset:{32*b} lds")
        a(f"s_add_u32 m0, {sPB}, 4096\nbuffer_load_dwordx4 v19, {SW}, s51 offen lds\ns_branch L_pJ1")
        a.label("L_pE")
        a(f"""s_mov_b32 {sTYPE}, 2
        s_sub_u32 {sS}, {sU}, 800
        s_mov_b32 s18, 25600
        s_cmp_lt_u32 {sS}, 20
        s_cselect_b32 s16, s74, s76
        s_cselect_b32 s17, s75, s77
        s_cselect_b32 {sDST}, 0, 1
        s_lshl_b32 {sDST}, {sDST}, 16
        s_add_u32 {sDST}, {sDST}, {WFK}
        s_cmp_lt_u32 {sS}, 20
        s_cselect_b32 s50, 0, 20
        s_sub_u32 {sS}, {sS}, s50
        s_lshl_b32 {sKB}, {sS}, 5
        s_mul_i32 s50, {sS}, 1536
        s_add_u32 {sDST}, {sDST}, s50""")
        kcalc()
        a(f"""v_mul_u32_u24 v18, 40, v18
        v_lshl_add_u32 v19, v17, 4, v18
        s_mov_b32 m0, {sPB}
        buffer_load_dwordx4 v19, {SW}, 0 offen lds
        s_add_u32 m0, {sPB}, 992
        buffer_load_dwordx4 v18, {SW}, 0 offen offset:32 lds""")
        a.label("L_pJ1")
        self.xloads_L1(0, 10)
        a(f"""v_lshlrev_b32 v12, 3, {vL}
        v_add_u32 v12, {sPB}, v12
        v_lshrrev_b32 v13, 2, {vL}
        v_lshlrev_b32 v13, 5, v13
        v_add_u32 v13, {sPB}, v13          ; row*32
        v_mul_u32_u24 v14, 24, v17
        v_add_u32 v14, v14, v13            ; T7 pattern
        v_bfe_u32 v15, {vL}, 1, 1
        v_lshl_add_u32 v15, v15, 10, v13
        v_lshl_add_u32 v15, v17, 4, v15
        v_and_b32 v16, 7, {vL}
        v_lshl_add_u32 v16, {vG}, 3, v16
        v_lshlrev_b32 v16, 4, v16
        s_add_u32 s50, {sDST}, 4096
        s_waitcnt vmcnt(20) lgkmcnt(0)
        s_cmp_eq_u32 {sTYPE}, 3
        s_cbranch_scc1 L_pJ2
        s_cmp_eq_u32 {sTYPE}, 1
        s_cbranch_scc1 L_pS1
        s_cmp_eq_u32 {sTYPE}, 2
        s_cbranch_scc1 L_pS2""")
        def tr(t, av, off):
            r = 128 + 4*t
            a(f"ds_read_b64_tr_b16 v[{r}:{r+1}], {av} offset:{off}\nds_read_b64_tr_b16 v[{r+2}:{r+3}], {av} offset:{off+512}")
        def st(t, half=False):
            r = 128 + 4*t
            so = sDST if t < 4 else "s50"
            if half: self.setexec(0x00ff00ff, 0x00ff00ff)
            a(f"buffer_store_dwordx4 v[{r}:{r+3}], {'v16' if half else vL16}, {WS}, {so} offen offset:{1024*(t%4)} sc1")
            if half: self.full()
        for t in range(7): tr(t, "v12", 1024*t)
        tr(7, "v14", 7168)
        for t in range(8):
            a(f"s_waitcnt lgkmcnt({min(15, 2*(7-t))})"); st(t, half=(t == 7))
        a("s_branch L_pJ2")
        a.label("L_pS1")
        tr(0, "v15", 0); tr(1, "v15", 8); tr(2, "v15", 2048); tr(3, "v15", 2056); tr(4, "v12", 4096)
        for t in range(5):
            a(f"s_waitcnt lgkmcnt({2*(4-t)})"); st(t)
        a("s_branch L_pJ2")
        a.label("L_pS2")
        tr(0, "v12", 0); tr(1, "v12", 1024)
        a("s_waitcnt lgkmcnt(2)"); st(0)
        a("s_waitcnt lgkmcnt(0)"); st(1, half=True)
        a.label("L_pJ2")
        self.xloads_L1(10, 20)
        a(f"""s_waitcnt vmcnt(20) lgkmcnt(0)
        s_add_u32 s20, s20, 1
        s_addc_u32 s21, s21, 0
        s_cmp_eq_u32 {sFLAG}, 0
        s_cbranch_scc1 L_pJ3""")
        self.flag(sFLAG)
        a.label("L_pJ3")
        self.stamp("prep_done")
        a(f"""v_mov_b32 v12, 0x3f803f80
        v_mov_b32 v13, 0x3f803f80
        v_mov_b32 v14, 0x3f803f80
        v_mov_b32 v15, 0x3f803f80
        s_waitcnt vmcnt(0)""")
        for s in range(20):
            for mt in range(2):
                r = (mt*20 + s)*4
                c1 = "0" if s == 0 else f"v[{64+8*mt}:{67+8*mt}]"
                c2 = "0" if s == 0 else f"v[{68+8*mt}:{71+8*mt}]"
                a(f"v_mfma_f32_16x16x32_bf16 v[{64+8*mt}:{67+8*mt}], v[12:15], a[{r}:{r+3}], {c1}")
                a(f"v_mfma_f32_16x16x32_bf16 v[{68+8*mt}:{71+8*mt}], a[{r}:{r+3}], a[{r}:{r+3}], {c2}")
        a(f"""v_and_b32 v16, 3, {vM}
        v_lshrrev_b32 v17, 2, {vM}
        v_cmp_eq_u32 s[40:41], 1, v16
        v_cmp_eq_u32 s[42:43], 2, v16
        v_cmp_eq_u32 s[44:45], 3, v16
        v_cmp_eq_u32 s[46:47], v17, {vG}""")
        for mt in range(2):
            q = 68 + 8*mt; d = 20 + 4*mt
            a(f"""v_cndmask_b32 v18, v{q}, v{q+1}, s[40:41]
            v_cndmask_b32 v18, v18, v{q+2}, s[42:43]
            v_cndmask_b32 v18, v18, v{q+3}, s[44:45]
            v_cndmask_b32 v{d+1}, 0, v18, s[46:47]
            v_mul_f32 v{d}, 0.25, v{64+8*mt}
            v_mov_b32 v{d+2}, 0
            v_mov_b32 v{d+3}, 0""")
        a(f"""s_barrier
        s_lshl_b32 s40, {sHP}, 8
        s_add_u32 s40, s40, {F0A}
        s_lshl_b32 s41, {sCB}, 8
        s_add_u32 s41, s41, {F0B - 160}
        v_mov_b32 v8, s40
        v_mov_b32 v9, s41
        v_cmp_lt_u32 s[42:43], 19, {vL}
        v_cndmask_b32 v8, v8, v9, s[42:43]
        v_lshl_add_u32 v8, {vL}, 3, v8""")
        self.poll("v8", "0", 0xffffffff, 0xff)
        self.stamp("prep_hop")
        self.wp1_dma()

    def wp1_dma(self):
        a = self.a
        a(f"""s_mul_i32 s41, {sHP}, 153600
        s_lshl_b32 s40, {sW}, 11
        s_add_u32 s41, s41, s40
        s_add_u32 s41, s41, {WF1}""")
        for s in range(20):
            if s: a("s_add_u32 s40, s40, 7680\ns_add_u32 s41, s41, 7680")
            a(f"s_mov_b32 m0, s40")
            a(f"buffer_load_dwordx4 {vL16}, {WS}, s41 offen sc1 lds")
            a(f"buffer_load_dwordx4 {vL16}, {WS}, s41 offen offset:1024 sc1 lds")

    def stats_final(self, d, out, scale=None):
        L = [f"v_add_f32 v{d}, v{d}, v{d+2}", f"v_add_f32 v{d+1}, v{d+1}, v{d+3}",
             f"v_mov_b32 v{d+2}, v{d}", f"v_mov_b32 v{d+3}, v{d+1}",
             f"v_permlane32_swap_b32 v{d}, v{d+2}", f"v_permlane32_swap_b32 v{d+1}, v{d+3}",
             f"v_add_f32 v{d}, v{d}, v{d+2}", f"v_add_f32 v{d+1}, v{d+1}, v{d+3}",
             f"v_mov_b32 v{d+2}, v{d}", f"v_mov_b32 v{d+3}, v{d+1}",
             f"v_permlane16_swap_b32 v{d}, v{d+2}", f"v_permlane16_swap_b32 v{d+1}, v{d+3}",
             f"v_add_f32 v{d}, v{d}, v{d+2}", f"v_add_f32 v{d+1}, v{d+1}, v{d+3}",
             f"v_mul_f32 v{d}, {f2u(1/640):#x}, v{d}",
             f"v_mul_f32 v{d+2}, v{d}, v{d}",
             f"v_mov_b32 v{d+3}, {f2u(1e-5):#x}",
             f"v_sub_f32 v{d+2}, v{d+3}, v{d+2}",
             f"v_fmac_f32 v{d+2}, {f2u(1/640):#x}, v{d+1}",
             f"v_max_f32 v{d+2}, v{d+2}, v{d+3}",
             f"v_rsq_f32 v{out}, v{d+2}",
             f"v_mul_f32 v{out+1}, v{d}, v{out}",
             f"v_sub_f32 v{out+1}, 0, v{out+1}"]
        return L

    def cs_split(self, nt, stepbytes, lds_x, csreg, halfreg=None, ones="v[12:15]", tmp=128):
        a = self.a; L = a.newlabel("L_cs")
        a(f"""v_lshlrev_b32 v9, 4, {vG}
        v_add_u32 v9, {lds_x}, v9
        s_cmp_eq_u32 {sLAY}, 0
        s_cbranch_scc0 {L}
        s_mul_i32 s40, {sW}, {5*stepbytes}
        v_add_u32 v16, s40, {vL16}
        v_mov_b32 v12, 0x3f803f80
        v_mov_b32 v13, 0x3f803f80
        v_mov_b32 v14, 0x3f803f80
        v_mov_b32 v15, 0x3f803f80""")
        if halfreg: a(f"v_add_u32 v17, s40, {halfreg}")
        def rd(s):
            for t in range(nt):
                r = tmp + (s % 2)*nt*4 + 4*t
                if halfreg and t == nt-1: a(f"ds_read_b128 v[{r}:{r+3}], v17 offset:{s*stepbytes}")
                else: a(f"ds_read_b128 v[{r}:{r+3}], v16 offset:{s*stepbytes + 1024*t}")
        rd(0)
        for s in range(5):
            if s < 4: rd(s+1); a(f"s_waitcnt lgkmcnt({nt})")
            else: a("s_waitcnt lgkmcnt(0)")
            for t in range(nt):
                r = tmp + (s % 2)*nt*4 + 4*t; c = csreg + 4*t
                a(f"v_mfma_f32_16x16x32_bf16 v[{c}:{c+3}], v[{r}:{r+3}], {ones}, {'0' if s == 0 else f'v[{c}:{c+3}]'}")
        a(f"s_mul_i32 s40, {sW}, {nt*64}\nv_add_u32 v16, s40, v9")
        self.setexec(0x00010001, 0x00010001)
        for t in range(nt):
            c = csreg + 4*t
            a(f"ds_write_b128 v16, v[{c}:{c+3}] offset:{64*t}")
        self.full()
        a("s_waitcnt lgkmcnt(0)\ns_barrier")
        a.label(L)
        for t in range(nt):
            for w in range(4):
                r = csreg + 4*t if w == 0 else tmp + 12*(t % 4) + 4*(w-1)
                a(f"ds_read_b128 v[{r}:{r+3}], v9 offset:{w*nt*64 + 64*t}")
            if t % 4 == 3 or t == nt-1:
                a("s_waitcnt lgkmcnt(0)")
                for t2 in range(t - t % 4, t+1):
                    c = csreg + 4*t2; r = tmp + 12*(t2 % 4)
                    for h in (0, 2):
                        a(f"""v_pk_add_f32 v[{r+h}:{r+h+1}], v[{r+h}:{r+h+1}], v[{r+4+h}:{r+5+h}]
                        v_pk_add_f32 v[{c+h}:{c+h+1}], v[{c+h}:{c+h+1}], v[{r+8+h}:{r+9+h}]
                        v_pk_add_f32 v[{c+h}:{c+h+1}], v[{c+h}:{c+h+1}], v[{r+h}:{r+h+1}]""")

    def p1(self):
        a = self.a
        a.label("L_P1")
        a.c("---- P1: qkv GEMM (128 rows x 2 heads) ----")
        a(f"""v_and_b32 v7, 7, {vL}
        v_lshl_add_u32 v7, {vG}, 3, v7
        v_lshlrev_b32 v7, 4, v7
        v_add_u32 v7, 7168, v7
        v_add_u32 v28, 61440, {vL16}
        v_add_u32 v29, 122880, {vL16}
        v_add_u32 v30, 61440, v7
        v_add_u32 v31, 122880, v7""")
        AD = [vL16, "v28", "v29"]; AH = ["v7", "v30", "v31"]
        def rd(s, t):
            r = 128 + 32*(s % 2) + 4*t; seg = s // 8; o = (s % 8)*7680
            if t == 7: return f"ds_read_b128 v[{r}:{r+3}], {AH[seg]} offset:{o}"
            return f"ds_read_b128 v[{r}:{r+3}], {AD[seg]} offset:{o + 1024*t}"
        fill = self.stats_final(20, 32) + self.stats_final(24, 34)
        a("s_waitcnt vmcnt(32)\ns_barrier")
        for t in range(8): a(rd(0, t))
        for s in range(20):
            if s % 4 == 3 and s < 19:
                a(f"s_waitcnt vmcnt({38 - 2*(s+4)})\ns_barrier")
            a("s_waitcnt lgkmcnt(0)")
            for t in range(8):
                for mt in range(2):
                    acc = 64 + (mt*8 + t)*4; w = 128 + 32*(s % 2) + 4*t; x = (mt*20 + s)*4
                    a(f"v_mfma_f32_16x16x32_bf16 v[{acc}:{acc+3}], v[{w}:{w+3}], a[{x}:{x+3}], {'0' if s == 0 else f'v[{acc}:{acc+3}]'}")
                    if mt == 0 and s < 19: a(rd(s+1, t))
                    if mt == 1 and s >= 1 and fill: a(fill.pop(0))
        assert not fill
        self.stamp("p1_kloop")
        self.cs_split(8, 7680, L_CSX1, 192, halfreg="v7")
        a(f"""v_mov_b32 v36, {f2u(1e-6):#x}
        v_mov_b32 v37, 0
        s_mov_b32 exec_hi, 0
        v_mov_b32 v37, v36
        s_mov_b32 exec_hi, -1
        s_lshl_b32 s40, {sW}, 5
        v_add_u32 v8, s40, {vM}
        v_mul_u32_u24 v8, 168, v8
        v_add_u32 v10, {L_KVS + 160}, v8
        v_lshl_add_u32 v8, {vG}, 3, v8
        v_add_u32 v8, {L_KVS}, v8
        v_lshrrev_b32 v9, 1, {vG}
        v_lshlrev_b32 v9, 6, v9
        v_add_u32 v9, v9, v8
        v_mov_b32 v38, 0x3f80
        v_mov_b32 v39, 0""")
        def ln(mt, t, eps):
            acc = 64 + (mt*8 + t)*4; c = 192 + 4*t; p = 32 + 2*mt
            for h in (0, 2):
                if eps is None:
                    a(f"v_pk_mul_f32 v[40:41], v[{c+h}:{c+h+1}], v[{p}:{p+1}] op_sel:[0,1] op_sel_hi:[1,1]")
                else:
                    a(f"v_pk_fma_f32 v[40:41], v[{c+h}:{c+h+1}], v[{p}:{p+1}], v[36:37] op_sel:[0,1,{eps}] op_sel_hi:[1,1,{eps}]")
                a(f"v_pk_fma_f32 v[{acc+h}:{acc+h+1}], v[{acc+h}:{acc+h+1}], v[{p}:{p+1}], v[40:41] op_sel:[0,0,0] op_sel_hi:[1,0,1]")
        def phi(mt, t):
            acc = 64 + (mt*8 + t)*4
            a(f"""v_pk_mul_f32 v[42:43], v[{acc}:{acc+1}], {sLOG2E}
            v_pk_mul_f32 v[44:45], v[{acc+2}:{acc+3}], {sLOG2E}""")
            for j in range(4): a(f"v_exp_f32 v{42+j}, v{42+j} clamp")
            for j in range(4): a(f"v_max_f32 v{acc+j}, v36, v{acc+j}")
            a(f"""v_pk_add_f32 v[{acc}:{acc+1}], v[{acc}:{acc+1}], v[42:43]
            v_pk_add_f32 v[{acc+2}:{acc+3}], v[{acc+2}:{acc+3}], v[44:45]""")
        def pack(mt, t, d):
            acc = 64 + (mt*8 + t)*4
            a(f"v_cvt_pk_bf16_f32 v{d}, v{acc}, v{acc+1}\nv_cvt_pk_bf16_f32 v{d+1}, v{acc+2}, v{acc+3}")
        for mt in range(2):
            a(f"ds_write_b64 v10, v[38:39] offset:{2688*mt}")
            for t, off, av in ((2, 0, "v8"), (3, 32, "v8"), (4, 64, "v9"), (5, 80, "v8"), (6, 112, "v8")):
                ln(mt, t, 0 if t < 4 else (1 if t == 4 else None))
                if t < 4: phi(mt, t)
                if t == 4:
                    a("s_mov_b32 exec_hi, 0"); phi(mt, t); a("s_mov_b32 exec_hi, -1")
                d = 46 + 2*((t + 5*mt) % 4)
                pack(mt, t, d)
                a(f"ds_write_b64 {av}, v[{d}:{d+1}] offset:{2688*mt + off}")
        a(f"""s_waitcnt lgkmcnt(0)
        s_barrier
        s_cmp_ge_u32 {sW}, 2
        s_cbranch_scc1 L_p1_w23""")
        a(f"""v_lshrrev_b32 v8, 5, {vL}
        v_lshlrev_b32 v8, 3, v8
        v_bfe_u32 v9, {vL}, 2, 2
        v_add_u32 v8, v8, v9
        v_mul_u32_u24 v8, 168, v8             ; rowpart
        v_add_u32 v8, {L_KVS}, v8
        v_and_b32 v9, 1, {vG}
        v_lshlrev_b32 v9, 2, v9
        v_and_b32 v10, 3, {vL}
        v_add_u32 v9, v9, v10                 ; sq
        s_mul_i32 s40, {sW}, 5
        v_add_u32 v10, s40, v9
        v_add_u32 v11, 10, v10
        v_cmp_lt_u32 s[42:43], 4, v9
        v_mov_b32 v9, 20
        v_cndmask_b32 v11, v11, v9, s[42:43]
        v_lshl_add_u32 v10, v10, 3, v8
        v_lshl_add_u32 v11, v11, 3, v8""")
        for ks in range(8):
            for (base, av) in ((128, "v10"), (160, "v11")):
                r = base + 4*ks
                a(f"ds_read_b64_tr_b16 v[{r}:{r+1}], {av} offset:{2688*ks}")
                a(f"ds_read_b64_tr_b16 v[{r+2}:{r+3}], {av} offset:{2688*ks + 672}")
            if ks >= 2:
                k2 = ks - 2
                a(f"s_waitcnt lgkmcnt(8)")
                a(f"v_mfma_f32_32x32x16_bf16 v[72:87], v[{128+4*k2}:{131+4*k2}], v[{160+4*k2}:{163+4*k2}], {'0' if k2 == 0 else 'v[72:87]'}")
        a(f"""v_and_b32 v8, 31, {vL}
        v_lshrrev_b32 v9, 5, {vL}
        v_mul_u32_u24 v9, 21, v9
        v_add_lshl_u32 v8, v8, v9, 4
        s_lshl_b32 s40, {sHP}, 4
        s_add_u32 s40, s40, {sRB2}
        s_mul_i32 s40, s40, 3584
        s_mul_i32 s41, {sW}, 1680
        s_add_u32 s40, s40, s41
        s_add_u32 s40, s40, {sLO}
        s_add_u32 s40, s40, {KP}
        s_lshl_b32 s41, {sHP}, 8
        s_lshl_b32 s42, {sRB2}, 4
        s_add_u32 s41, s41, s42
        s_lshl_b32 s42, {sW}, 3
        s_add_u32 s41, s41, s42
        s_add_u32 s41, s41, {sLO}""")
        for k2 in (6, 7):
            a(f"s_waitcnt lgkmcnt({4*(7-k2)})")
            a(f"v_mfma_f32_32x32x16_bf16 v[72:87], v[{128+4*k2}:{131+4*k2}], v[{160+4*k2}:{163+4*k2}], v[72:87]")
        self.setexec(0x1fffff, 0x1fffff)
        a(f"""buffer_store_dwordx4 v[72:75], v8, {WS}, s40 offen sc1
        buffer_store_dwordx4 v[76:79], v8, {WS}, s40 offen offset:672 sc1
        s_mov_b32 exec_hi, 0
        buffer_store_dwordx4 v[80:83], v8, {WS}, s40 offen offset:1344 sc1
        s_waitcnt vmcnt(0)""")
        self.flag("s41")
        a("s_branch L_p1_j")
        a.label("L_p1_w23")
        a(f"""s_cmp_ge_u32 {sCB}, 2
        s_cbranch_scc1 L_p1_j
        s_sub_u32 s40, {sW}, 2
        s_mul_i32 s40, s40, 15360
        s_lshl_b32 s41, {sCB}, 16
        s_add_u32 s41, s41, s40
        s_add_u32 s41, s41, {WFK}
        s_add_u32 s40, s40, {L_WKV}""")
        self.dma_linear(15, "s40", "s41")
        a.label("L_p1_j")
        self.stamp("p1_pub")
        self.w80_dma(WF3)
        for mt in range(2):
            for t in (0, 1, 7):
                ln(mt, t, 0); phi(mt, t)
            b = 224 + 8*mt
            pack(mt, 0, b); pack(mt, 7, b+2); pack(mt, 1, b+4); pack(mt, 7, b+6)
        self.stop_at("p1")

    def w80_dma(self, base):
        a = self.a
        a(f"""s_mul_i32 s40, {sW}, 25600
        s_mul_i32 s41, {sCB}, 102400
        s_add_u32 s41, s41, s40
        s_add_u32 s41, s41, {base}""")
        self.dma_linear(25, "s40", "s41")

    def p2(self):
        a = self.a
        a.c("---- P2: reduce kv, o = num/den ----")
        for r in range(192, 216): a(f"v_mov_b32 v{r}, 0")
        a(f"""v_lshlrev_b32 v8, 3, {vL}
        s_lshl_b32 s44, {sHP}, 8
        s_add_u32 s44, s44, {sLO}
        s_lshl_b32 s40, {sW}, 10
        v_add_u32 v9, s40, {vL16}             ; id*16
        v_lshrrev_b32 v10, 1, v9
        v_add_u32 v10, {L_KVB}, v10
        s_mul_i32 s40, {sHP}, {16*3584}
        s_add_u32 s40, s40, {sLO}
        s_add_u32 s40, s40, {KP}
        v_mul_u32_u24 v11, 168, {vG}
        v_add_u32 v11, {L_KVB}, v11           ; a5 = g*21*8
        v_lshl_add_u32 v12, {vM}, 3, v11      ; a1
        v_lshlrev_b32 v13, 3, {vM}
        v_add_u32 v13, {L_KVB}, v13           ; a2
        v_and_b32 v14, 3, {vL}
        v_lshlrev_b32 v14, 3, v14
        v_add_u32 v15, v14, v11               ; a3
        v_add_u32 v14, {L_KVB}, v14           ; a4
        v_mov_b32 v16, {L_KVB}                ; a6
        s_lshl_b32 s45, {sRB2}, 3
        s_lshl_b32 s46, {sW}, 1
        s_add_u32 s45, s45, s46
        s_mul_i32 s45, s45, 20480
        s_add_u32 s45, s45, {sLO}
        s_add_u32 s45, s45, {OA}
        s_lshl_b32 s46, {sHP}, 8
        s_add_u32 s46, s46, s45
        s_add_u32 s46, s46, 16384             ; piece B
        s_lshl_b32 s47, {sHP}, 10
        s_add_u32 s45, s45, s47               ; piece A
        s_add_u32 s48, s45, 20480
        s_add_u32 s49, s46, 20480
        v_lshlrev_b32 v17, 4, {vM}
        v_lshl_add_u32 v17, {vG}, 3, v17
        s_lshl_b32 s47, {sRB2}, 2
        s_add_u32 s47, s47, {sW}
        s_lshl_b32 s47, s47, 7
        s_lshl_b32 s50, {sHP}, 3
        s_add_u32 s47, s47, s50
        s_add_u32 s47, s47, {sLO}
        s_add_u32 s47, s47, {F2}
        s_mov_b32 s42, 0xffff
        s_mov_b32 s43, 0""")
        self.poll("v8", "s44", 0xffffffff, 0)
        self.stamp("hop1")
        for p in range(16):
            r = 128 + 4*p
            if p and p % 2 == 0: a("s_add_u32 s40, s40, 7168")
            a(f"buffer_load_dwordx4 v[{r}:{r+3}], v9, {WS}, s40 offen offset:{3584*(p%2)} sc1")
        for p in range(0, 16, 2):
            a(f"s_waitcnt vmcnt({14-p})")
            r = 128 + 4*p
            for h in (0, 2): a(f"v_pk_add_f32 v[{r+h}:{r+h+1}], v[{r+h}:{r+h+1}], v[{r+4+h}:{r+5+h}]")
            if p % 4 == 2:
                for h in (0, 2): a(f"v_pk_add_f32 v[{r-8+h}:{r-7+h}], v[{r-8+h}:{r-7+h}], v[{r+h}:{r+h+1}]")
            if p % 8 == 6:
                for h in (0, 2): a(f"v_pk_add_f32 v[{r-24+h}:{r-23+h}], v[{r-24+h}:{r-23+h}], v[{r-8+h}:{r-7+h}]")
        for h in (0, 2): a(f"v_pk_add_f32 v[{128+h}:{129+h}], v[{128+h}:{129+h}], v[{160+h}:{161+h}]")
        a(f"""v_cvt_pk_bf16_f32 v128, v128, v129
        v_cvt_pk_bf16_f32 v129, v130, v131
        v_cmp_gt_u32 vcc, 3360, v9
        s_and_saveexec_b64 s[50:51], vcc
        ds_write_b64 v10, v[128:129]
        s_mov_b64 exec, -1
        s_waitcnt lgkmcnt(0)
        s_barrier""")
        for h in range(2):
            X, Y, Z = 192 + 4*h, 200 + 4*h, 208 + 4*h
            o = h*5*168
            gm = (0xffff, 0xffff0000)[h]; ym = (0x000f000f, 0x00f000f0)[h]; zm = (0x11111111, 0x22222222)[h]
            a(f"ds_read_b64 v[{X}:{X+1}], v12 offset:{o}")
            self.setexec(gm, 0); a(f"ds_read_b64 v[{X+2}:{X+3}], v13 offset:{o + 4*168}")
            self.setexec(ym, ym); a(f"ds_read_b64 v[{Y}:{Y+1}], v15 offset:{o + 128}")
            self.setexec(ym & gm, 0); a(f"ds_read_b64 v[{Y+2}:{Y+3}], v14 offset:{o + 4*168 + 128}")
            self.setexec(zm, zm); a(f"ds_read_b64 v[{Z}:{Z+1}], v11 offset:{o + 160}")
            self.setexec(zm & gm, 0); a(f"ds_read_b64 v[{Z+2}:{Z+3}], v16 offset:{o + 4*168 + 160}")
            self.full()
        a("s_waitcnt lgkmcnt(0)")
        for mt in range(2):
            d = 64 + 16*mt; B0 = f"v[{224+8*mt}:{227+8*mt}]"; B1 = f"v[{228+8*mt}:{231+8*mt}]"
            a(f"""v_mfma_f32_16x16x32_bf16 v[{d+12}:{d+15}], v[208:211], {B0}, 0
            v_mfma_f32_16x16x32_bf16 v[{d+12}:{d+15}], v[212:215], {B1}, v[{d+12}:{d+15}]
            v_mfma_f32_16x16x32_bf16 v[{d}:{d+3}], v[192:195], {B0}, 0
            v_mfma_f32_16x16x32_bf16 v[{d+4}:{d+7}], v[196:199], {B1}, 0
            v_mfma_f32_16x16x32_bf16 v[{d+8}:{d+11}], v[200:203], {B0}, 0
            v_mfma_f32_16x16x32_bf16 v[{d+8}:{d+11}], v[204:207], {B1}, v[{d+8}:{d+11}]""")
        for mt in range(2):
            d = 64 + 16*mt; p = 100 + 8*mt
            a(f"""v_add_f32 v{d+12}, v36, v{d+12}
            v_add_f32 v{d+13}, v36, v{d+13}
            v_rcp_f32 v{d+12}, v{d+12}
            v_rcp_f32 v{d+13}, v{d+13}
            v_cndmask_b32 v{d+14}, v{d+13}, v{d+12}, s[42:43]
            v_pk_mul_f32 v[{d}:{d+1}], v[{d}:{d+1}], v[{d+12}:{d+13}] op_sel:[0,0] op_sel_hi:[1,0]
            v_pk_mul_f32 v[{d+2}:{d+3}], v[{d+2}:{d+3}], v[{d+12}:{d+13}] op_sel:[0,0] op_sel_hi:[1,0]
            v_pk_mul_f32 v[{d+4}:{d+5}], v[{d+4}:{d+5}], v[{d+12}:{d+13}] op_sel:[0,1] op_sel_hi:[1,1]
            v_pk_mul_f32 v[{d+6}:{d+7}], v[{d+6}:{d+7}], v[{d+12}:{d+13}] op_sel:[0,1] op_sel_hi:[1,1]
            v_pk_mul_f32 v[{d+8}:{d+9}], v[{d+8}:{d+9}], v[{d+14}:{d+15}] op_sel:[0,0] op_sel_hi:[1,0]
            v_pk_mul_f32 v[{d+10}:{d+11}], v[{d+10}:{d+11}], v[{d+14}:{d+15}] op_sel:[0,0] op_sel_hi:[1,0]""")
            for i in range(6): a(f"v_cvt_pk_bf16_f32 v{p+i}, v{d+2*i}, v{d+2*i+1}")
            a(f"""buffer_store_dwordx4 v[{p}:{p+3}], {vL16}, {WS}, {('s45','s48')[mt]} offen sc1
            s_mov_b32 exec_hi, 0
            buffer_store_dwordx2 v[{p+4}:{p+5}], v17, {WS}, {('s46','s49')[mt]} offen sc1
            s_mov_b32 exec_hi, -1""")
        a("s_waitcnt vmcnt(0)")
        self.flag("s47")
        self.stamp("p2_pub")
        self.stop_at("p2")

    def aloads(self, s_base):
        a = self.a
        for s in range(20):
            if s and s % 4 == 0: a(f"s_add_u32 {s_base}, {s_base}, 4096")
            a(f"buffer_load_dwordx4 a[{4*s}:{4*s+3}], {vL16}, {WS}, {s_base} offen offset:{1024*(s%4)} sc1")

    def gemm80(self, init_zero, vmw=True):
        a = self.a
        a(f"v_add_u32 v28, 51200, {vL16}")
        def rd(s, t):
            r = 128 + 20*(s % 3) + 4*t
            return f"ds_read_b128 v[{r}:{r+3}], {vL16 if s < 10 else 'v28'} offset:{(s % 10)*5120 + 1024*t}"
        for s in (0, 1):
            for t in range(5): a(rd(s, t))
        for s in range(20):
            lg = 5 if s < 19 else 0
            a(f"s_waitcnt vmcnt({19-s}) lgkmcnt({lg})" if vmw else f"s_waitcnt lgkmcnt({lg})")
            for t in range(5):
                acc = 64 + 4*t; w = 128 + 20*(s % 3) + 4*t
                c = "0" if (s == 0 and init_zero) else f"v[{acc}:{acc+3}]"
                a(f"v_mfma_f32_16x16x32_bf16 v[{acc}:{acc+3}], v[{w}:{w+3}], a[{4*s}:{4*s+3}], {c}")
                if s < 18: a(rd(s+2, t))

    def xaddr(self):
        a = self.a
        a(f"""s_lshr_b32 s45, {sCB}, 1
        s_mul_i32 s45, s45, 5120
        s_and_b32 s47, {sCB}, 1
        s_lshl_b32 s46, s47, 9
        s_add_u32 s46, s46, s45
        s_add_u32 s46, s46, 2048
        s_mul_i32 s47, s47, 3072
        s_add_u32 s45, s45, s47
        s_mul_i32 s47, {sRG}, 20480
        s_add_u32 s47, s47, {sLO}
        s_add_u32 s45, s45, s47
        s_add_u32 s46, s46, s47""")

    def rowmajor_addr(self):
        a = self.a
        a(f"""s_lshl_b32 s50, {sRG}, 4
        v_add_u32 v18, s50, {vM}
        v_mul_u32_u24 v18, 1280, v18
        s_and_b32 s50, {sCB}, 1
        s_cmp_eq_u32 s50, 1
        s_cselect_b32 s51, 0, 128
        s_lshl_b32 s50, s50, 5
        s_mul_i32 s52, {sCB}, 160
        s_add_u32 s50, s50, s52
        s_add_u32 s51, s51, s52
        v_lshl_add_u32 v19, {vG}, 3, v18
        v_add_u32 v19, s51, v19
        v_lshl_add_u32 v18, {vG}, 4, v18
        v_add_u32 v18, s50, v18""")

    def unpack_res(self, src, to_acc):
        a = self.a
        for i in range(10):
            if to_acc:
                a(f"v_lshlrev_b32 v{64+2*i}, 16, v{src+i}\nv_and_b32 v{65+2*i}, 0xffff0000, v{src+i}")
            else:
                a(f"""v_lshlrev_b32 v40, 16, v{src+i}
                v_and_b32 v41, 0xffff0000, v{src+i}
                v_accvgpr_write_b32 a{224+2*i}, v40
                v_accvgpr_write_b32 a{225+2*i}, v41""")

    def res_to_acc(self):
        for i in range(20): self.a(f"v_accvgpr_read_b32 v{64+i}, a{224+i}")

    def x_epilogue(self, XF, ST, s_flag):
        a = self.a
        a(f"""v_lshrrev_b32 v17, 1, {vG}
        v_lshlrev_b32 v17, 8, v17
        v_lshl_add_u32 v17, {vM}, 4, v17
        v_and_b32 v16, 1, {vG}
        v_lshl_add_u32 v17, v16, 3, v17
        v_lshlrev_b32 v16, 3, {vM}
        s_add_u32 s45, s45, {XF}
        s_add_u32 s46, s46, {XF}
        s_lshl_b32 s48, {sRG}, 10
        s_lshl_b32 s49, {sCB}, 7
        s_add_u32 s48, s48, s49
        s_add_u32 s48, s48, {sLO}
        s_add_u32 s48, s48, {ST}""")
    def x_epilogue2(self, s_flag):
        a = self.a
        for i in range(10): a(f"v_cvt_pk_bf16_f32 v{100+i}, v{64+2*i}, v{65+2*i}")
        a(f"""buffer_store_dwordx4 v[100:103], {vL16}, {WS}, s45 offen sc1
        buffer_store_dwordx4 v[104:107], {vL16}, {WS}, s45 offen offset:1024 sc1
        buffer_store_dwordx2 v[108:109], v17, {WS}, s46 offen sc1
        v_pk_add_f32 v[40:41], v[64:65], v[66:67]
        v_pk_mul_f32 v[42:43], v[64:65], v[64:65]
        v_pk_fma_f32 v[42:43], v[66:67], v[66:67], v[42:43]""")
        for i in range(2, 10):
            a(f"""v_pk_add_f32 v[40:41], v[40:41], v[{64+2*i}:{65+2*i}]
            v_pk_fma_f32 v[42:43], v[{64+2*i}:{65+2*i}], v[{64+2*i}:{65+2*i}], v[42:43]""")
        a(f"""v_add_f32 v40, v40, v41
        v_add_f32 v41, v42, v43
        v_mov_b32 v42, v40
        v_mov_b32 v43, v41
        v_permlane32_swap_b32 v40, v42
        v_permlane32_swap_b32 v41, v43
        v_add_f32 v40, v40, v42
        v_add_f32 v41, v41, v43
        v_mov_b32 v42, v40
        v_mov_b32 v43, v41
        v_permlane16_swap_b32 v40, v42
        v_permlane16_swap_b32 v41, v43
        v_add_f32 v40, v40, v42
        v_add_f32 v41, v41, v43""")
        self.setexec(0xffff, 0)
        a(f"""buffer_store_dwordx2 v[40:41], v16, {WS}, s48 offen sc1
        s_waitcnt vmcnt(0)""")
        self.flag(s_flag)

    def p3(self):
        a = self.a
        a.c("---- P3: x1 = x + o_A @ wo_A ----")
        a(f"""s_cmp_eq_u32 {sLAY}, 0
        s_cbranch_scc0 L_p3_r1""")
        self.rowmajor_addr()
        a(f"""buffer_load_dwordx4 v[100:103], v18, {SX}, 0 offen
        buffer_load_dwordx4 v[104:107], v18, {SX}, 0 offen offset:64
        buffer_load_dwordx2 v[108:109], v19, {SX}, 0 offen
        s_waitcnt vmcnt(0)""")
        self.unpack_res(100, True)
        a("s_branch L_p3_r2")
        a.label("L_p3_r1")
        self.res_to_acc()
        a.label("L_p3_r2")
        self.xaddr()
        self.x_epilogue(X1F, ST1, None)
        a(f"""v_lshlrev_b32 v8, 3, {vL}
        s_lshr_b32 s44, {sRG}, 1
        s_lshl_b32 s44, s44, 7
        s_add_u32 s44, s44, {sLO}
        s_add_u32 s44, s44, {F2}
        s_mul_i32 s40, {sRG}, 20480
        s_add_u32 s40, s40, {sLO}
        s_add_u32 s40, s40, {OA}
        s_lshl_b32 s52, {sRG}, 7
        s_add_u32 s52, s52, {sLO}
        s_add_u32 s52, s52, {F3}
        s_lshl_b32 s53, {sCB}, 3
        s_add_u32 s53, s53, s52""")
        self.poll("v8", "s44", 0xffff, 0)
        self.stamp("hop2")
        self.aloads("s40")
        self.gemm80(False)
        self.stamp("p3_kloop")
        self.x_epilogue2("s53")
        self.stamp("p3_pub")
        a("s_barrier")
        self.w80_dma(WFQ)
        self.unpack_res(100, False)
        self.stop_at("p3")

    def p4(self):
        a = self.a
        a.c("---- P4: q,k,v projections ----")
        a(f"""v_and_b32 v7, 7, {vL}
        v_lshl_add_u32 v7, {vG}, 3, v7
        v_lshlrev_b32 v7, 4, v7
        v_add_u32 v7, {L_WKV + 1024}, v7
        v_add_u32 v29, {L_WKV}, {vL16}
        v_mov_b32 v12, 0x3f803f80
        v_mov_b32 v13, 0x3f803f80
        v_mov_b32 v14, 0x3f803f80
        v_mov_b32 v15, 0x3f803f80""")
        def rd(s, t):
            r = 128 + 8*(s % 4) + 4*t
            return f"ds_read_b128 v[{r}:{r+3}], {'v7' if t else 'v29'} offset:{1536*s}"
        def kvloop(acc, trans, xop, vmw):
            for s in range(3):
                for t in range(2): a(rd(s, t))
            for s in range(20):
                lg = min(4, 2*(19-s))
                a(f"s_waitcnt vmcnt({19-s}) lgkmcnt({lg})" if vmw else f"s_waitcnt lgkmcnt({lg})")
                for t in range(2):
                    w = 128 + 8*(s % 4) + 4*t; d = acc + 4*t
                    A, B = (f"v[{w}:{w+3}]", xop(s)) if trans else (xop(s), f"v[{w}:{w+3}]")
                    a(f"v_mfma_f32_16x16x32_bf16 v[{d}:{d+3}], {A}, {B}, {'0' if s == 0 else f'v[{d}:{d+3}]'}")
                    if s < 17: a(rd(s+3, t))
        a(f"""s_cmp_eq_u32 {sCB}, 0
        s_cbranch_scc0 L_p4_c1""")
        kvloop(92, True, lambda s: "v[12:15]", False)
        a("s_branch L_p4_c2")
        a.label("L_p4_c1")
        a(f"""s_cmp_eq_u32 {sCB}, 1
        s_cbranch_scc0 L_p4_c2""")
        kvloop(92, False, lambda s: "v[12:15]", False)
        a.label("L_p4_c2")
        a(f"""s_and_b32 s40, {sCB}, 1
        s_lshl_b32 s41, s40, 2
        s_xor_b32 s40, s40, 1
        s_lshl_b32 s40, s40, 4
        s_mul_i32 s42, {sW}, 3072
        s_add_u32 s42, s42, {L_Q}""")
        for t in range(5):
            if t < 4: a(f"v_lshlrev_b32 v8, 1, {vG}\nv_add_u32 v8, s41, v8\nv_add_u32 v8, {8*(t//2) + t % 2}, v8")
            else: a(f"v_add_u32 v8, s40, {vG}")
            a(f"""v_mul_u32_u24 v9, 52, v8
            v_lshrrev_b32 v9, 8, v9              ; head
            v_mul_u32_u24 v10, 5, v9
            v_sub_u32 v8, v8, v10                ; qi
            v_and_b32 v10, 1, v9
            v_lshl_add_u32 v10, v10, 4, {vM}     ; column c
            v_lshrrev_b32 v9, 1, v9
            v_mul_u32_u24 v9, 1536, v9
            v_add_u32 v9, s42, v9
            v_lshrrev_b32 v11, 1, v8
            v_lshl_add_u32 v11, v11, 5, v10
            v_lshlrev_b32 v11, 4, v11
            v_and_b32 v16, 1, v8
            v_lshl_add_u32 v11, v16, 3, v11      ; Q1 offset
            v_lshlrev_b32 v10, 3, v10
            v_add_u32 v10, 1024, v10             ; Q2 offset
            v_cmp_eq_u32 s[44:45], 4, v8
            v_cndmask_b32 v11, v11, v10, s[44:45]
            v_add_u32 v{20+t}, v9, v11""")
        a(f"""s_lshr_b32 s40, {sRG}, 1            ; tile32
        s_and_b32 s41, {sRG}, 1
        s_lshl_b32 s42, s41, 4
        v_add_u32 v8, s42, {vM}
        v_lshlrev_b32 v8, 4, v8              ; key32*16
        v_lshrrev_b32 v9, 1, {vG}
        v_and_b32 v10, 1, {vG}
        v_lshl_add_u32 v25, v9, 9, v8
        v_lshl_add_u32 v25, v10, 3, v25
        v_lshl_add_u32 v26, {vG}, 9, v8
        v_mul_u32_u24 v27, 336, v10
        v_lshl_add_u32 v27, {vM}, 4, v27
        v_lshl_add_u32 v27, v9, 3, v27
        s_lshl_b32 s46, s40, 10
        s_add_u32 s46, s46, {sLO}
        s_add_u32 s46, s46, {KF1}
        s_lshr_b32 s47, s40, 1
        s_lshl_b32 s47, s47, 10
        s_and_b32 s43, s40, 1
        s_lshl_b32 s43, s43, 3
        s_add_u32 s47, s47, s43
        s_add_u32 s47, s47, {sLO}
        s_add_u32 s47, s47, {KF2}
        s_mul_i32 s48, s40, 1344
        s_mul_i32 s43, s41, 672
        s_add_u32 s48, s48, s43
        s_add_u32 s48, s48, {sLO}
        s_add_u32 s48, s48, {VF}
        s_lshr_b32 s49, {sRG}, 5
        s_lshl_b32 s49, s49, 9
        s_lshl_b32 s43, {sCB}, 8
        s_add_u32 s49, s49, s43
        s_and_b32 s43, {sRG}, 31
        s_lshl_b32 s43, s43, 3
        s_add_u32 s49, s49, s43
        s_add_u32 s49, s49, {sLO}
        s_add_u32 s49, s49, {F4}
        v_lshlrev_b32 v8, 3, {vL}
        s_mul_i32 s40, {sRG}, 20480
        s_add_u32 s40, s40, {sLO}
        s_add_u32 s40, s40, {X1F}
        s_lshl_b32 s41, {sRG}, 10
        s_add_u32 s41, s41, {sLO}
        s_add_u32 s41, s41, {ST1}
        v_lshlrev_b32 v9, 3, {vM}
        v_lshl_add_u32 v9, {vG}, 8, v9""")
        self.poll("v8", "s52", 0xff, 0)
        self.stamp("hop3")
        a(f"""buffer_load_dwordx2 v[40:41], v9, {WS}, s41 offen sc1
        buffer_load_dwordx2 v[42:43], v9, {WS}, s41 offen offset:128 sc1""")
        self.aloads("s40")
        a("s_waitcnt vmcnt(20)")
        for i in self.stats_final(40, 32): a(i)
        a(f"""s_cmp_eq_u32 {sCB}, 0
        s_cbranch_scc0 L_p4_k1""")
        kvloop(84, True, lambda s: f"a[{4*s}:{4*s+3}]", True)
        for h in (0, 2, 4, 6):
            a(f"""v_pk_mul_f32 v[40:41], v[{92+h}:{93+h}], v[32:33] op_sel:[0,1] op_sel_hi:[1,1]
            v_pk_fma_f32 v[{84+h}:{85+h}], v[{84+h}:{85+h}], v[32:33], v[40:41] op_sel:[0,0,0] op_sel_hi:[1,0,1]
            v_cvt_pk_bf16_f32 v{100+h//2}, v{84+h}, v{85+h}""")
        a(f"buffer_store_dwordx2 v[100:101], v25, {WS}, s46 offen sc1")
        self.setexec(0xffff0000, 0)
        a(f"""v_mov_b32 v102, 0x3f80
        v_mov_b32 v103, 0
        s_mov_b32 exec_lo, -1
        buffer_store_dwordx2 v[102:103], v26, {WS}, s47 offen sc1
        s_waitcnt vmcnt(0)""")
        self.flag("s49")
        a("s_branch L_p4_k2")
        a.label("L_p4_k1")
        a(f"""s_cmp_eq_u32 {sCB}, 1
        s_cbranch_scc0 L_p4_k2
        s_lshl_b32 s43, {sW}, 7
        s_add_u32 s43, s43, {L_VST}
        v_lshlrev_b32 v8, 3, {vM}
        v_add_u32 v8, s43, v8
        v_lshlrev_b32 v9, 5, {vG}
        v_add_u32 v9, s43, v9
        ds_write_b64 v8, v[32:33]
        ds_read_b128 v[44:47], v9
        ds_read_b128 v[48:51], v9 offset:16""")
        kvloop(84, False, lambda s: f"a[{4*s}:{4*s+3}]", True)
        for t in range(2):
            for j in range(4):
                a(f"""v_mul_f32 v40, v{45+2*j}, v{92+4*t}
                v_fma_f32 v{84+4*t+j}, v{84+4*t+j}, v{44+2*j}, v40""")
            a(f"v_cvt_pk_bf16_f32 v{100+2*t}, v{84+4*t}, v{85+4*t}\nv_cvt_pk_bf16_f32 v{101+2*t}, v{86+4*t}, v{87+4*t}")
        a(f"buffer_store_dwordx2 v[100:101], v27, {WS}, s48 offen sc1")
        self.setexec(0x00100010, 0x00100010)
        a("v_mov_b32 v102, 0x3f803f80\nv_mov_b32 v103, 0x3f803f80")
        self.setexec(0x001f001f, 0x001f001f)
        a(f"""buffer_store_dwordx2 v[102:103], v27, {WS}, s48 offen offset:256 sc1
        s_waitcnt vmcnt(0)""")
        self.flag("s49")
        a.label("L_p4_k2")
        self.stamp("kv_pub")
        a("s_barrier")
        self.gemm80(True)
        self.cs_split(5, 5120, L_CSX4, 192)
        qs = (20 ** -0.5) * 1.4426950408889634
        a(f"""v_mul_f32 v32, {f2u(qs):#x}, v32
        v_mul_f32 v33, {f2u(qs):#x}, v33""")
        for t in range(5):
            for h in (0, 2):
                c = 192 + 4*t + h; acc = 64 + 4*t + h
                a(f"""v_pk_mul_f32 v[40:41], v[{c}:{c+1}], v[32:33] op_sel:[0,1] op_sel_hi:[1,1]
                v_pk_fma_f32 v[{acc}:{acc+1}], v[{acc}:{acc+1}], v[32:33], v[40:41] op_sel:[0,0,0] op_sel_hi:[1,0,1]
                v_cvt_pk_bf16_f32 v{100+2*t+h//2}, v{acc}, v{acc+1}""")
            a(f"ds_write_b64 v{20+t}, v[{100+2*t}:{101+2*t}]")
        a(f"""s_mul_i32 s42, {sW}, 3072
        s_add_u32 s42, s42, {L_Q}
        v_lshlrev_b32 v25, 3, {vL}
        v_add_u32 v25, s42, v25
        v_add_u32 v26, s42, {vL16}
        v_mov_b32 v40, 0
        v_mov_b32 v41, 0
        s_mov_b32 exec_lo, 0
        ds_write_b64 v25, v[40:41] offset:1024
        ds_write_b64 v25, v[40:41] offset:2560
        s_mov_b32 exec_lo, -1""")
        self.stamp("q_done")
        self.stop_at("p4")

    def p5(self):
        a = self.a
        a.c("---- P5: attention ----")
        K1 = lambda kt: f"a[{4*kt}:{4*kt+3}]"
        K2 = lambda kt: f"a[{64+2*kt}:{65+2*kt}]"
        V = lambda kt, h: f"a[{96+8*kt+4*h}:{99+8*kt+4*h}]"
        S = lambda b: (64 + 16*b)
        Q1 = lambda ct: f"v[{160+8*ct}:{163+8*ct}]"
        Q2 = lambda ct: f"v[{164+8*ct}:{165+8*ct}]"
        O = lambda ct: 128 + 16*ct
        a(f"""v_lshlrev_b32 v8, 3, {vL}
        s_lshl_b32 s44, {sW}, 9
        s_add_u32 s44, s44, {sLO}
        s_add_u32 s44, s44, {F4}
        s_lshl_b32 s40, {sW}, 14
        s_add_u32 s40, s40, {sLO}
        s_add_u32 s40, s40, {KF1}
        s_lshl_b32 s41, {sW}, 13
        s_add_u32 s41, s41, {sLO}
        s_add_u32 s41, s41, {KF2}
        s_mul_i32 s42, {sW}, {16*1344}
        s_add_u32 s42, s42, {sLO}
        s_add_u32 s42, s42, {VF}
        v_and_b32 v9, 31, {vL}
        v_min_u32 v9, 20, v9
        v_lshlrev_b32 v9, 4, v9
        v_lshrrev_b32 v10, 5, {vL}
        v_mul_u32_u24 v10, 336, v10
        v_add_u32 v9, v9, v10
        s_waitcnt lgkmcnt(0)
        ds_read_b128 {Q1(0)}, v26
        ds_read_b64 {Q2(0)}, v25 offset:1024
        ds_read_b128 {Q1(1)}, v26 offset:1536
        ds_read_b64 {Q2(1)}, v25 offset:2560""")
        self.poll("v8", "s44", 0xffffffff, 0xffffffff)
        self.stamp("hop4")
        for p in range(8):
            if p: a("s_add_u32 s40, s40, 2048\ns_add_u32 s41, s41, 1024\ns_add_u32 s42, s42, 2688")
            a(f"""buffer_load_dwordx4 {K1(2*p)}, {vL16}, {WS}, s40 offen sc1
            buffer_load_dwordx4 a[{64+4*p}:{67+4*p}], {vL16}, {WS}, s41 offen sc1
            buffer_load_dwordx4 {V(2*p,0)}, v9, {WS}, s42 offen sc1
            buffer_load_dwordx4 {V(2*p,1)}, v9, {WS}, s42 offen offset:672 sc1
            buffer_load_dwordx4 {K1(2*p+1)}, {vL16}, {WS}, s40 offen offset:1024 sc1
            buffer_load_dwordx4 {V(2*p+1,0)}, v9, {WS}, s42 offen offset:1344 sc1
            buffer_load_dwordx4 {V(2*p+1,1)}, v9, {WS}, s42 offen offset:2016 sc1""")
            if p == 3:
                a("s_waitcnt vmcnt(26) lgkmcnt(0)")
                for ct in range(2):
                    s = S(ct)
                    a(f"""v_mfma_f32_32x32x16_bf16 v[{s}:{s+15}], {K1(0)}, {Q1(ct)}, 0
                    v_mfma_f32_32x32x8_bf16 v[{s}:{s+15}], {K2(0)}, {Q2(ct)}, v[{s}:{s+15}]""")
        for ct in range(2):
            s = S(ct)
            a(f"v_max3_f32 v{40+ct}, v{s}, v{s+1}, v{s+2}")
            for i in range(3, 15, 2): a(f"v_max3_f32 v{40+ct}, v{40+ct}, v{s+i}, v{s+i+1}")
            a(f"v_max_f32 v{40+ct}, v{40+ct}, v{s+15}")
        a(f"""v_mov_b32 v42, v40
        v_mov_b32 v43, v41
        v_permlane32_swap_b32 v40, v42
        v_permlane32_swap_b32 v41, v43
        v_max_f32 v40, v40, v42
        v_max_f32 v41, v41, v43
        v_sub_f32 v40, {f2u(-30.0):#x}, v40
        v_sub_f32 v41, {f2u(-30.0):#x}, v41
        v_cvt_pk_bf16_f32 v40, v40, 0
        v_cvt_pk_bf16_f32 v41, v41, 0
        s_mov_b32 exec_lo, 0
        ds_write_b32 v25, v40 offset:1024
        ds_write_b32 v25, v41 offset:2560
        s_mov_b32 exec_lo, -1
        s_mov_b32 s55, 0""")
        a.label("L_att_start")
        a(f"""s_mul_i32 s46, {sW}, {4*6144}
        s_mul_i32 s47, {sW}, 6144
        s_add_u32 s47, s47, s46
        v_add_u32 v29, s47, {vL16}
        s_add_u32 s45, {sW}, 1
        s_and_b32 s45, s45, 3
        s_mul_i32 s47, s45, 3072
        s_add_u32 s47, s47, {L_Q}
        v_add_u32 v27, s47, {vL16}
        v_lshlrev_b32 v30, 3, {vL}
        v_add_u32 v28, s47, v30
        s_mov_b32 s44, 0
        s_waitcnt lgkmcnt(0)
        s_barrier
        ds_read_b128 {Q1(0)}, v27
        ds_read_b64 {Q2(0)}, v28 offset:1024
        ds_read_b128 {Q1(1)}, v27 offset:1536
        ds_read_b64 {Q2(1)}, v28 offset:2560
        s_waitcnt vmcnt(49) lgkmcnt(0)
        v_mfma_f32_32x32x16_bf16 v[{S(0)}:{S(0)+15}], {K1(0)}, {Q1(0)}, 0
        v_mfma_f32_32x32x8_bf16 v[{S(0)}:{S(0)+15}], {K2(0)}, {Q2(0)}, v[{S(0)}:{S(0)+15}]
        s_nop 7""")
        self.stamp("att_start")
        a(".p2align 3")
        a.label("L_att_loop")
        E, P = 96, 112
        def exps(b, i0): return [f"v_exp_f32 v{E+i}, v{S(b)+i}" for i in range(i0, i0+4)]
        def cvt(p): return f"v_cvt_pk_bf16_f32 v{P+p}, v{E+2*p}, v{E+2*p+1}"
        for u in range(32):
            kt, ct = u // 2, u % 2
            n = (u + 1) % 32; nkt, nct = n // 2, n % 2
            pu = (u - 1) % 32; pkt, pct = pu // 2, pu % 2
            b, nb = u % 2, n % 2
            ex = {0: [], 1: [], 2: [], 3: []}
            pre = {0: [], 1: [], 2: [], 3: []}
            if u in (0, 1):
                for i in range(3):
                    ex[i].append(f"ds_write_b128 v29, v[{O(ct)+4*i}:{O(ct)+4*i+3}] offset:{3072*ct + 1024*i}")
            if u == 2:
                ex[0] += [f"s_mul_i32 s47, s45, 6144", "s_add_u32 s47, s47, s46", f"v_add_u32 v29, s47, {vL16}"]
                ex[1] += ["s_add_u32 s45, s45, 1", "s_and_b32 s45, s45, 3", "s_mul_i32 s47, s45, 3072", f"s_add_u32 s47, s47, {L_Q}"]
                ex[2] += [f"v_add_u32 v27, s47, {vL16}", "v_add_u32 v28, s47, v30"]
            if u == 29:
                ex[2] += [f"ds_read_b128 {Q1(0)}, v27", f"ds_read_b64 {Q2(0)}, v28 offset:1024"]
            if u == 30:
                ex[2] += [f"ds_read_b128 {Q1(1)}, v27 offset:1536", f"ds_read_b64 {Q2(1)}, v28 offset:2560"]
            if u == 31:
                pre[0] += ["s_waitcnt lgkmcnt(2)"]
                ex[3] += ["s_add_u32 s44, s44, 1", "s_cmp_lt_u32 s44, 4"]
            if u == 0: pre[0] += ["s_waitcnt lgkmcnt(0)"]
            if nct == 0 and nkt % 2 == 0 and nkt > 0: pre[0] += [f"s_waitcnt vmcnt({56 - 7*(nkt//2+1)})"]
            e0 = exps(b, 0); e1 = exps(b, 4); e2 = exps(b, 8); e3 = exps(b, 12)
            sl = [
              ([f"v_mfma_f32_32x32x16_bf16 v[{S(nb)}:{S(nb)+15}], {K1(nkt)}, {Q1(nct)}, 0"], [e0[0], cvt(6), e0[1], cvt(7), e0[2], e0[3]]),
              ([f"v_mfma_f32_32x32x8_bf16 v[{S(nb)}:{S(nb)+15}], {K2(nkt)}, {Q2(nct)}, v[{S(nb)}:{S(nb)+15}]"], [e1[0], cvt(0), e1[1], cvt(1), e1[2], e1[3]]),
              ([f"v_mfma_f32_32x32x16_bf16 v[{O(pct)}:{O(pct)+15}], {V(pkt,1)}, v[{P+4}:{P+7}], v[{O(pct)}:{O(pct)+15}]"], [e2[0], cvt(2), e2[1], cvt(3), e2[2], e2[3]]),
              ([f"v_mfma_f32_32x32x16_bf16 v[{O(ct)}:{O(ct)+15}], {V(kt,0)}, v[{P}:{P+3}], {'0' if kt == 0 else f'v[{O(ct)}:{O(ct)+15}]'}"], [e3[0], cvt(4), e3[1], cvt(5), e3[2], e3[3]]),
            ]
            for i, (m, v) in enumerate(sl):
                for x in pre[i] + m + v + ex[i]: a(x)
        a("s_cbranch_scc1 L_att_loop")
        a(f"""{cvt(6)}
        {cvt(7)}
        v_mfma_f32_32x32x16_bf16 v[{O(1)}:{O(1)+15}], {V(15,1)}, v[{P+4}:{P+7}], v[{O(1)}:{O(1)+15}]""")
        self.stamp("att_loop")
        a(f"""s_mul_i32 s47, {sW}, 6144
        v_add_u32 v29, s47, {vL16}
        v_add_u32 v31, 49152, v29
        s_waitcnt lgkmcnt(0)
        s_barrier""")
        a(f"""s_add_u32 s45, {sW}, 1""")
        for k in range(3):
            a(f"""s_and_b32 s45, s45, 3
            s_mul_i32 s48, s45, {4*6144}
            s_add_u32 s48, s48, s47
            v_add_u32 v31, s48, {vL16}
            s_add_u32 s45, s45, 1""")
            for i in range(6):
                r = 176 + 24*k + 4*i
                a(f"ds_read_b128 v[{r}:{r+3}], v31 offset:{1024*i}")
        for k in range(3):
            a(f"s_waitcnt lgkmcnt({6*(2-k)})")
            for ct in range(2):
                for i in range(0, 12, 2):
                    r = 176 + 24*k + 12*ct + i; o = O(ct) + i
                    a(f"v_pk_add_f32 v[{o}:{o+1}], v[{o}:{o+1}], v[{r}:{r+1}]")
        self.xaddr()
        a(f"""s_add_u32 s45, s45, {OB}
        s_add_u32 s46, s46, {OB}
        v_mov_b32 v40, v{O(0)+8}
        v_mov_b32 v41, v{O(0)+8}
        v_mov_b32 v42, v{O(1)+8}
        v_mov_b32 v43, v{O(1)+8}
        v_permlane32_swap_b32 v40, v41
        v_permlane32_swap_b32 v42, v43
        v_mov_b32 v44, {f2u(2.0**100):#x}
        v_cmp_nlt_f32 s[48:49], v41, v44
        v_cmp_nlt_f32 s[50:51], v43, v44
        v_rcp_f32 v41, v41
        v_rcp_f32 v43, v43
        v_mov_b32 v45, 0
        v_mov_b32 v44, 0""")
        for ct in range(2):
            o = O(ct); rr = f"v[{40+2*ct}:{41+2*ct}]"
            for i in range(0, 12, 2):
                if i == 8: a("s_mov_b32 exec_hi, 0")
                a(f"v_pk_mul_f32 v[{o+i}:{o+i+1}], v[{o+i}:{o+i+1}], {rr} op_sel:[0,1] op_sel_hi:[1,1]")
                a(f"v_pk_fma_f32 v[44:45], v[{o+i}:{o+i+1}], 0, v[44:45]")
                d = (100 + 4*ct + i//2) if i < 8 else (108 + 2*ct + (i-8)//2)
                a(f"v_cvt_pk_bf16_f32 v{d}, v{o+i}, v{o+i+1}")
            a("s_mov_b32 exec_hi, -1")
        a(f"""v_cmp_u_f32 vcc, v44, v45
        s_or_b64 s[48:49], s[48:49], s[50:51]
        s_or_b64 s[48:49], s[48:49], vcc
        s_cmp_lg_u64 s[48:49], 0
        s_cselect_b32 s48, 1, 0
        s_lshl_b32 s49, {sW}, 2
        s_add_u32 s49, s49, {L_FLG}
        v_mov_b32 v46, s49
        v_mov_b32 v47, s48
        v_mov_b32 v48, {L_FLG}
        ds_write_b32 v46, v47
        s_waitcnt lgkmcnt(0)
        s_barrier
        ds_read_b128 v[48:51], v48
        s_waitcnt lgkmcnt(0)
        v_or_b32 v48, v48, v49
        v_or3_b32 v48, v48, v50, v51
        v_readfirstlane_b32 s48, v48
        s_andn2_b32 s48, s48, s55
        s_cmp_lg_u32 s48, 0
        s_cbranch_scc1 L_fallback
        s_lshl_b32 s52, {sRG}, 7
        s_add_u32 s52, s52, {sLO}
        s_add_u32 s52, s52, {F5}
        s_lshl_b32 s53, {sCB}, 3
        s_add_u32 s53, s53, s52
        buffer_store_dwordx4 v[100:103], {vL16}, {WS}, s45 offen sc1
        buffer_store_dwordx4 v[104:107], {vL16}, {WS}, s45 offen offset:1024 sc1
        s_mov_b32 exec_hi, 0
        buffer_store_dwordx4 v[108:111], {vL16}, {WS}, s46 offen sc1
        s_waitcnt vmcnt(0)""")
        self.flag("s53")
        self.stamp("p5_pub")
        self.w80_dma(WF6)
        self.stop_at("p5")

    def fallback(self):
        a = self.a
        K1 = lambda kt: f"a[{4*kt}:{4*kt+3}]"
        K2 = lambda kt: f"a[{64+2*kt}:{65+2*kt}]"
        a.label("L_fallback")
        a(f"""s_mov_b32 s55, 1
        s_mov_b32 s44, 0
        v_add_u32 v27, {L_Q}, {vL16}
        v_lshlrev_b32 v28, 3, {vL}
        v_add_u32 v28, {L_Q}, v28
        s_lshl_b32 s45, {sW}, 10
        v_and_b32 v29, 31, {vL}
        v_lshlrev_b32 v29, 2, v29
        v_add_u32 v31, s45, v29""")
        a.label("L_fb_loop")
        a(f"""ds_read_b128 v[160:163], v27
        ds_read_b64 v[164:165], v28 offset:1024
        s_waitcnt lgkmcnt(0)
        s_mov_b32 exec_lo, 0
        v_mov_b32 v164, 0
        s_mov_b32 exec_lo, -1
        v_mov_b32 v40, 0xff800000""")
        for kt in range(16):
            a(f"""v_mfma_f32_32x32x16_bf16 v[64:79], {K1(kt)}, v[160:163], 0
            v_mfma_f32_32x32x8_bf16 v[64:79], {K2(kt)}, v[164:165], v[64:79]""")
            for i in range(0, 16, 2): a(f"v_max3_f32 v40, v40, v{64+i}, v{65+i}")
        a(f"""v_mov_b32 v41, v40
        v_permlane32_swap_b32 v40, v41
        v_max_f32 v40, v40, v41
        ds_write_b32 v31, v40
        v_add_u32 v27, 1536, v27
        v_add_u32 v28, 1536, v28
        v_add_u32 v31, 128, v31
        s_add_u32 s44, s44, 1
        s_cmp_lt_u32 s44, 8
        s_cbranch_scc1 L_fb_loop
        s_waitcnt lgkmcnt(0)
        s_barrier
        s_lshl_b32 s45, {sW}, 8
        v_add_u32 v31, s45, v29""")
        for ct in range(2):
            for w in range(4): a(f"ds_read_b32 v{40+4*ct+w}, v31 offset:{1024*w + 128*ct}")
        a("s_waitcnt lgkmcnt(0)")
        for ct in range(2):
            r = 40 + 4*ct
            a(f"""v_max3_f32 v{r}, v{r}, v{r+1}, v{r+2}
            v_max_f32 v{r}, v{r}, v{r+3}
            v_sub_f32 v{r}, 0, v{r}
            v_cvt_pk_bf16_f32 v{r}, v{r}, 0""")
        a(f"""s_mov_b32 exec_lo, 0
        ds_write_b32 v25, v40 offset:1024
        ds_write_b32 v25, v44 offset:2560
        s_mov_b32 exec_lo, -1
        s_waitcnt lgkmcnt(0)
        s_barrier
        s_branch L_att_start""")

    def p6(self):
        a = self.a
        a.c("---- P6: x2 = x1 + o_B @ wo_B ----")
        self.res_to_acc()
        self.xaddr()
        self.x_epilogue(X2F, ST2, None)
        self.rowmajor_addr()
        a(f"""v_lshlrev_b32 v8, 3, {vL}
        s_lshl_b32 s52, {sRG}, 7
        s_add_u32 s52, s52, {sLO}
        s_add_u32 s52, s52, {F5}
        s_mul_i32 s40, {sRG}, 20480
        s_add_u32 s40, s40, {sLO}
        s_add_u32 s40, s40, {OB}
        s_lshl_b32 s53, {sRG}, 6
        s_lshl_b32 s49, {sCB}, 3
        s_add_u32 s53, s53, s49
        s_add_u32 s53, s53, {sLO}
        s_add_u32 s53, s53, {F6}""")
        self.poll("v8", "s52", 0xff, 0)
        self.stamp("hop5")
        self.aloads("s40")
        a("s_barrier")
        self.gemm80(False)
        self.stamp("p6_kloop")
        a(f"""s_cmp_eq_u32 {sLAY}, 1
        s_cbranch_scc1 L_final""")
        self.x_epilogue2("s53")
        self.stamp("p6_pub")
        a("s_barrier")
        self.wp1_dma()
        self.unpack_res(100, False)
        self.stop_at("p6")
        a(f"""v_lshlrev_b32 v8, 3, {vL}
        s_lshl_b32 s44, {sRB2}, 2
        s_add_u32 s44, s44, {sW}
        s_mul_i32 s40, s44, 40960
        s_add_u32 s40, s40, {sLO}
        s_add_u32 s40, s40, {X2F}
        s_add_u32 s42, s40, 20480
        s_lshl_b32 s41, s44, 11
        s_add_u32 s41, s41, {sLO}
        s_add_u32 s41, s41, {ST2}
        s_lshl_b32 s44, s44, 7
        s_add_u32 s44, s44, {sLO}
        s_add_u32 s44, s44, {F6}
        v_lshlrev_b32 v9, 3, {vM}
        v_lshl_add_u32 v9, {vG}, 8, v9""")
        self.poll("v8", "s44", 0xffff, 0)
        self.stamp("hop6")
        for mt in range(2):
            a(f"""buffer_load_dwordx2 v[{20+4*mt}:{21+4*mt}], v9, {WS}, s41 offen offset:{1024*mt} sc1
            buffer_load_dwordx2 v[{22+4*mt}:{23+4*mt}], v9, {WS}, s41 offen offset:{1024*mt+128} sc1""")
        for s in range(20):
            if s and s % 4 == 0: a("s_add_u32 s40, s40, 4096\ns_add_u32 s42, s42, 4096")
            for mt in range(2):
                r = (mt*20 + s)*4
                a(f"buffer_load_dwordx4 a[{r}:{r+3}], {vL16}, {WS}, {('s40','s42')[mt]} offen offset:{1024*(s%4)} sc1")
        a(f"""s_mov_b32 {sLAY}, 1
        s_add_u32 {sLO}, {sLO}, {LSZ}
        s_branch L_P1""")
        a.label("L_final")
        for i in range(10): a(f"v_cvt_pk_bf16_f32 v{100+i}, v{64+2*i}, v{65+2*i}")
        a(f"""buffer_store_dwordx4 v[100:103], v18, {SO}, 0 offen
        buffer_store_dwordx4 v[104:107], v18, {SO}, 0 offen offset:64
        buffer_store_dwordx2 v[108:109], v19, {SO}, 0 offen""")
        self.stamp("final")
        a.label("L_end")
        if self.stamps:
            a(f"""s_lshl_b32 s40, {sWG}, 2
            s_add_u32 s40, s40, {sW}
            s_lshl_b32 s40, s40, 8
            s_add_u32 s40, s40, {STAMP}
            v_lshlrev_b32 v8, 2, {vL}
            buffer_store_dword v255, v8, {WS}, s40 offen""")
        a(f"""s_add_u32 s40, {sWG}, {sW}
        s_cmp_eq_u32 s40, 0
        s_cbranch_scc0 L_abort""")
        self.flag("0")
        a.label("L_abort")
        a("s_endpgm")

    def build(self):
        self.prologue(); self.stamp("start"); self.prep(); self.p1(); self.p2(); self.p3(); self.p4(); self.p5(); self.p6(); self.fallback()
        lines = insert_nops(self.a.lines)
        errs = check_waits(lines)
        return lines, errs

HEADER = open("cdna_kernels/" + NAME + ".s.ref").read().split("; Override launch")[0]
def emit(lines):
    s = HEADER + f"; @launch grid=(256,1,1) block=(256,1,1) lds={LDS_BYTES}\n"
    s += f'.amdgcn_target "amdgcn-amd-amdhsa--gfx950"\n.text\n.globl {NAME}_kernel\n.p2align 8\n.type {NAME}_kernel,@function\n{NAME}_kernel:\n'
    for l in lines:
        s += (l if l.endswith(":") else "    " + l) + "\n"
    s += f""".section .rodata,"a"
.p2align 6
.amdhsa_kernel {NAME}_kernel
  .amdhsa_next_free_vgpr 512
  .amdhsa_next_free_sgpr 102
  .amdhsa_accum_offset 256
  .amdhsa_group_segment_fixed_size 0
  .amdhsa_kernarg_size 88
  .amdhsa_user_sgpr_count 2
  .amdhsa_user_sgpr_kernarg_segment_ptr 1
  .amdhsa_system_sgpr_workgroup_id_x 1
  .amdhsa_float_denorm_mode_32 3
.end_amdhsa_kernel
"""
    return s

if __name__ == "__main__":
    import argparse
    ap = argparse.ArgumentParser()
    ap.add_argument("--stop"); ap.add_argument("--stamps", action="store_true"); ap.add_argument("-o", default="cdna_kernels/" + NAME + ".s")
    args = ap.parse_args()
    g = Gen(stop=args.stop, stamps=args.stamps)
    lines, errs = g.build()
    for e in errs: print("WAITCHK:", e)
    open(args.o, "w").write(emit(lines))
    if args.stamps: open(args.o + ".stamps", "w").write("\n".join(g.stampnames))
    print("lines", len(lines), "nops", sum(1 for l in lines if l.startswith("s_nop")))
```

```python
from mbh import *
from cdna_launch import _hip, _check
ON_GPU = os.path.exists('/dev/kfd')
K=[]
def mk(name, n, lds, agpr=False):
    I=[]
    for j in range(n):
        if j%4==0 and j: I.append("s_add_u32 s40, s40, 4096")
        if lds:
            if j%4==0: I.append(f"s_add_u32 m0, s43, {1024*(j%16)}\ns_nop 0")
            I.append(f"buffer_load_dwordx4 v1, s[28:31], s40 offen offset:{1024*(j%4)} sc1 lds")
        else: I.append(f"buffer_load_dwordx4 {'a' if agpr else 'v'}[{16+4*(j%48)}:{19+4*(j%48)}], v1, s[28:31], s40 offen offset:{1024*(j%4)} sc1")
    body = f"""
    s_load_dwordx4 s[4:7], s[0:1], 0
    v_lshrrev_b32 v12, 6, v0
    v_and_b32 v0, 63, v0
    s_nop 0
    v_readfirstlane_b32 s48, v12
    v_lshlrev_b32 v1, 4, v0
    s_waitcnt lgkmcnt(0)
    s_mov_b32 s8, s4
    s_mov_b32 s9, s5
    s_mov_b32 s10, 0x100000
    s_mov_b32 s11, 0x00020000
    s_mov_b32 s28, s6
    s_mov_b32 s29, s7
    s_mov_b32 s30, 0x8000000
    s_mov_b32 s31, 0x00020000
    s_lshl_b32 s43, s48, 14
    s_lshr_b32 s44, s2, 6
    s_lshl_b32 s44, s44, 3
    s_and_b32 s45, s2, 7
    s_add_u32 s44, s44, s45
    s_lshl_b32 s44, s44, 2
    s_add_u32 s44, s44, s48
    s_mov_b32 s20, 0
L_{name}:
    s_mul_i32 s40, s44, 65536
    s_barrier
    s_memtime s[12:13]
    s_waitcnt lgkmcnt(0)
    """ + "\n".join(I) + f"""
    s_memtime s[16:17]
    s_waitcnt vmcnt({n-1}) lgkmcnt(0)
    s_memtime s[18:19]
    s_waitcnt vmcnt(0) lgkmcnt(0)
    s_memtime s[14:15]
    s_waitcnt lgkmcnt(0)
    s_sub_u32 s14, s14, s12
    s_sub_u32 s16, s16, s12
    s_sub_u32 s18, s18, s12
    s_lshl_b32 s3, s2, 7
    s_lshl_b32 s40, s48, 5
    s_add_u32 s3, s3, s40
    s_lshl_b32 s40, s20, 4
    s_add_u32 s3, s3, s40
    v_mov_b32 v2, s3
    v_mov_b32 v4, s16
    v_mov_b32 v5, s18
    v_mov_b32 v6, s14
    v_mov_b32 v7, 0
    buffer_store_dwordx4 v[4:7], v2, s[8:11], 0 offen
    s_waitcnt vmcnt(0)
    s_add_u32 s20, s20, 1
    s_cmp_lt_u32 s20, 2
    s_cbranch_scc1 L_{name}
"""
    K.append((name, body, 512, 256)); return name
N=[]
for lds in (False, True):
    for n in (2,4,8,12,16,20,32,40):
        N.append(mk(f"{'dma' if lds else 'reg'}{n}", n, lds))
co = build(K, "mb13")
if ON_GPU:
    import torch
    m = Mod(co)
    out = DeviceBuffer(0x100000); A = DeviceBuffer(0x8000000)
    big = torch.empty(1<<26, dtype=torch.uint8, device="cuda")
    for n in N:
        r=[]
        for rep in range(3):
            big.fill_(rep)
            m.launch(n, (256,1,1), (256,1,1), [out.ptr, A.ptr, 0, 0], lds=100*1024); sync()
            o = out.to_numpy(np.uint32, (256,4,2,4)); r.append(np.median(o, axis=(0,1)))
        r = np.median(np.array(r), axis=0)
        print(f"{n}: L2miss issue/first/all {r[0][:3]}  L2hit {r[1][:3]}")
```

```python
from mbh import *
from cdna_launch import _hip, _check
ON_GPU = os.path.exists('/dev/kfd')
K=[]
R=50
def hop(name, mode, st, nload=20, same=True, allpoll=True, jitter=0, pipe=0, gap=1, data=False):
    mp = """
    s_and_b32 s20, s2, 7
    s_lshr_b32 s21, s2, 3
    s_lshl_b32 s20, s20, 2
    s_lshr_b32 s22, s21, 3
    s_add_u32 s20, s20, s22
    s_and_b32 s21, s21, 7
""" if same else """
    s_lshr_b32 s20, s2, 3
    s_and_b32 s21, s2, 7
"""
    loads = "\n".join((f"s_add_u32 s38, s38, 4096\n" if j and j%4==0 else "") + f"buffer_load_dwordx4 v[{32+4*j}:{35+4*j}], v1, s[28:31], s38 offen offset:{1024*(j%4)} sc1" for j in range(nload))
    checks = "\n".join(f"v_cmp_ne_u32 vcc, s44, v{32+i}\n v_addc_co_u32 v24, vcc, 0, v24, vcc" for i in range(0,4*nload,4))
    wave = mode == "wave"
    if data:
        POLL = f"""s_mov_b32 exec_lo, -1
    v_and_b32 v12, 7, v0
    v_mul_u32_u24 v12, 2560, v12
    v_lshrrev_b32 v13, 3, v0
    v_mul_u32_u24 v13, 20480, v13
    v_add3_u32 v12, v12, v13, 64
    s_mul_i32 s54, s20, 81920
    s_add_u32 s54, s54, s49
L_{name}_poll:
    buffer_load_dword v14, v12, s[28:31], s54 offen offset:2492 sc1
    s_add_u32 s50, s50, 1
    s_cmp_gt_u32 s50, 100000
    s_cbranch_scc1 L_{name}_pd
    s_waitcnt vmcnt(0)
    v_cmp_ne_u32 vcc, s44, v14
    s_cbranch_vccnz L_{name}_poll"""
    elif pipe == 0:
        POLL = f"""L_{name}_poll:
    buffer_load_dwordx2 v[14:15], v10, s[32:35], s46 offen sc1
    s_add_u32 s50, s50, 1
    s_cmp_gt_u32 s50, 100000
    s_cbranch_scc1 L_{name}_pd
    s_waitcnt vmcnt(0)
    v_cmp_ne_u64 vcc, s[44:45], v[14:15]
    s_cbranch_vccnz L_{name}_poll"""
    else:
        POLL = "\n".join(f"buffer_load_dwordx2 v[{14+2*i}:{15+2*i}], v10, s[32:35], s46 offen sc1\ns_sleep {gap}" for i in range(pipe-1)) + f"\nL_{name}_poll:\n"
        for i in range(pipe):
            j = (i + pipe - 1) % pipe
            POLL += f"""buffer_load_dwordx2 v[{14+2*j}:{15+2*j}], v10, s[32:35], s46 offen sc1
    s_waitcnt vmcnt({pipe-1})
    v_cmp_ne_u64 vcc, s[44:45], v[{14+2*i}:{15+2*i}]
    s_cbranch_vccz L_{name}_pd
"""
        POLL += f"""s_add_u32 s50, s50, 1
    s_cmp_gt_u32 s50, 100000
    s_cbranch_scc0 L_{name}_poll"""
    if jitter:
        JIT = f"""s_mul_i32 s52, s52, 1103515245
    s_add_u32 s52, s52, 12345
    s_lshr_b32 s53, s52, 20
    s_and_b32 s53, s53, {jitter}
    s_add_u32 s53, s53, 1
L_{name}_j:
    s_sleep 1
    s_sub_u32 s53, s53, 1
    s_cmp_lg_u32 s53, 0
    s_cbranch_scc1 L_{name}_j"""
    else: JIT = ""
    body = f"""
    s_load_dwordx2 s[4:5], s[0:1], 0
    s_load_dwordx4 s[24:27], s[0:1], 8
    {mp}
    v_lshrrev_b32 v12, 6, v0
    v_and_b32 v0, 63, v0
    s_nop 0
    v_readfirstlane_b32 s48, v12
    s_waitcnt lgkmcnt(0)
    s_mov_b32 s8, s4
    s_mov_b32 s9, s5
    s_mov_b32 s10, 0x100000
    s_mov_b32 s11, 0x00020000
    s_mov_b32 s28, s24
    s_mov_b32 s29, s25
    s_mov_b32 s30, {2621440*(R+2)}
    s_mov_b32 s31, 0x00020000
    s_mov_b32 s32, s26
    s_mov_b32 s33, s27
    s_mov_b32 s34, 0x1000000
    s_mov_b32 s35, 0x00020000
    s_lshl_b32 s23, s20, 2
    s_add_u32 s23, s23, s48        ; rg
    s_mul_i32 s36, s23, 20480
    s_mul_i32 s37, s21, 2560
    s_add_u32 s37, s37, s36
    v_lshlrev_b32 v1, 4, v0
    v_lshlrev_b32 v2, 3, v0
    v_mov_b32 v24, 0
    s_mul_i32 s46, {"s23" if wave else "s20"}, {max(128, 8*st)}
    v_mul_u32_u24 v10, {st}, v0
    s_mul_i32 s47, s21, {st}
    s_add_u32 s47, s47, s46
    v_mov_b32 v11, 0
    s_mov_b32 s44, 0
    s_mov_b32 s45, 0
    s_mul_i32 s52, s2, 37
    s_memrealtime s[12:13]
    s_waitcnt lgkmcnt(0)
L_{name}_loop:
    s_add_u32 s44, s44, 1
    s_add_u32 s46, s46, 0x20000
    s_add_u32 s47, s47, 0x20000
    s_mul_i32 s49, s44, 2621440
    s_add_u32 s38, s36, s49
    s_add_u32 s39, s37, s49
    v_mov_b32 v4, s44
    v_mov_b32 v5, s44
    v_mov_b32 v6, s44
    v_mov_b32 v7, s44
    v_mov_b32 v8, s44
    v_mov_b32 v9, 0
    {JIT}
    buffer_store_dwordx4 v[4:7], v1, s[28:31], s39 offen sc1
    buffer_store_dwordx4 v[4:7], v1, s[28:31], s39 offen offset:1024 sc1
    buffer_store_dwordx2 v[4:5], v2, s[28:31], s39 offen offset:2048 sc1
    {"" if data else "s_waitcnt vmcnt(0)"}
    {"" if (wave or data) else "s_barrier"}
    {"" if (wave or data) else "s_cmp_lg_u32 s48, 0"}
    {"" if (wave or data) else "s_cbranch_scc1 L_%s_w" % name}
    {"" if data else "s_mov_b64 exec, 1"}
    {"" if data else "buffer_store_dwordx2 v[8:9], v11, s[32:35], s47 offen sc1"}
L_{name}_w:
    {"" if allpoll else "s_cmp_lg_u32 s48, 0"}
    {"" if allpoll else "s_cbranch_scc1 L_%s_pd" % name}
    s_mov_b64 exec, 0xff
    s_mov_b32 s50, 0
{POLL}
L_{name}_pd:
    s_mov_b64 exec, -1
    {"" if allpoll else "s_barrier"}
    {loads}
    s_waitcnt vmcnt(0)
    {checks}
    s_cmp_lt_u32 s44, {R}
    s_cbranch_scc1 L_{name}_loop
    s_memrealtime s[14:15]
    s_waitcnt lgkmcnt(0)
    s_sub_u32 s14, s14, s12
    s_lshl_b32 s3, s2, 11
    s_lshl_b32 s40, s48, 9
    s_add_u32 s3, s3, s40
    v_add_u32 v1, s3, v2
    v_mov_b32 v4, s14
    v_mov_b32 v5, v24
    buffer_store_dwordx2 v[4:5], v1, s[8:11], 0 offen
    s_waitcnt vmcnt(0)
"""
    K.append((name, body, 128, 128)); return name
N=[]
for same in (True, False):
  for jit in (0, 7):
   for nl in (1, 20):
    t = f"{'S' if same else 'X'}j{jit}n{nl}"
    N.append(hop(f"{t}_flag", "wg", 8, nl, same, allpoll=False, jitter=jit))
    N.append(hop(f"{t}_data", "wg", 8, nl, same, allpoll=False, jitter=jit, data=True))
co = build(K, "mb10c")
if ON_GPU:
    m = Mod(co)
    out = DeviceBuffer(0x100000); A = DeviceBuffer(2621440*(R+2)); F = DeviceBuffer(0x1000000)
    for n in N:
        ts=[]; errs=0
        for rep in range(5):
            _check(_hip.hipMemset(ctypes.c_void_p(F.ptr), 0, 0x1000000))
            _check(_hip.hipMemset(ctypes.c_void_p(A.ptr), 0xff, 2621440*(R+2)))
            m.launch(n, (256,1,1), (256,1,1), [out.ptr, A.ptr, F.ptr, 0], lds=100*1024); sync()
            o = out.to_numpy(np.uint32, (256,256,2))
            ts.append(np.median(o[:,0,0])*10/R); errs += int(o[:,:,1].sum())
        print(f"{n}: ns per round {np.median(ts):.0f} errors {errs}")
```

```python
from mbh import *
from cdna_launch import _hip, _check
ON_GPU = os.path.exists('/dev/kfd')
K=[]
def body(name, gen, n_per_iter, iters, prep=""):
    L=["""
    s_load_dwordx4 s[4:7], s[0:1], 0
    s_waitcnt lgkmcnt(0)
    s_mov_b32 s8, s4
    s_mov_b32 s9, s5
    s_mov_b32 s10, 0x100000
    s_mov_b32 s11, 0x00020000
    s_mov_b32 s12, s6
    s_mov_b32 s13, s7
    s_mov_b32 s14, 0x200000
    s_mov_b32 s15, 0x00020000
    v_lshlrev_b32 v1, 4, v0
    s_mov_b32 s20, 0
"""]
    for i in range(56): L.append(f"buffer_load_dwordx4 a[{4*i}:{4*i+3}], v1, s[12:15], s20 offen\ns_add_u32 s20, s20, 4096")
    for r in range(160,192,4): L.append(f"buffer_load_dwordx4 v[{r}:{r+3}], v1, s[12:15], s20 offen\ns_add_u32 s20, s20, 4096")
    L.append("s_mov_b32 s20, 0x100000")
    for r in range(192,256,4): L.append(f"buffer_load_dwordx4 v[{r}:{r+3}], v1, s[12:15], s20 offen\ns_add_u32 s20, s20, 4096")
    L.append("s_waitcnt vmcnt(0)")
    L.append(prep)
    L.append("s_mov_b64 exec, -1")
    for r in range(64,160): L.append(f"v_mov_b32 v{r}, 0")
    L.append(f"""s_mov_b32 s21, 200
L_{name}_idle:
    s_sleep 1
    s_sub_u32 s21, s21, 1
    s_cmp_lg_u32 s21, 0
    s_cbranch_scc1 L_{name}_idle
    s_barrier
    s_mov_b32 s44, 0
    s_memrealtime s[22:23]
    s_memtime s[24:25]
    s_waitcnt lgkmcnt(0)
L_{name}_loop:""")
    L += gen()
    L.append(f"""s_add_u32 s44, s44, 1
    s_cmp_lt_u32 s44, {iters}
    s_cbranch_scc1 L_{name}_loop
    s_memrealtime s[26:27]
    s_memtime s[28:29]
    s_waitcnt lgkmcnt(0)
    s_sub_u32 s26, s26, s22
    s_sub_u32 s28, s28, s24
    v_mov_b32 v4, s26
    v_mov_b32 v5, s28
    v_lshrrev_b32 v6, 6, v0
    s_lshl_b32 s3, s2, 2
    v_add_u32 v6, s3, v6
    v_lshlrev_b32 v6, 3, v6
    buffer_store_dwordx2 v[4:5], v6, s[8:11], 0 offen
    s_waitcnt vmcnt(0)""")
    K.append((name, "\n".join(L), 512, 256, n_per_iter*iters))
k2prep = "s_mov_b32 exec_lo, 0\nv_mov_b32 v164, 0xc1f0\nv_mov_b32 v165, 0\nv_mov_b32 v172, 0xc1f0\nv_mov_b32 v173, 0\nv_mov_b32 v2, 0x3f80\nv_mov_b32 v3, 0\n" + "\n".join(f"v_accvgpr_write_b32 a{64+2*kt}, v2\nv_accvgpr_write_b32 a{65+2*kt}, v3" for kt in range(16))
vz = "\ns_mov_b32 exec_lo, 0xffe00000\ns_mov_b32 exec_hi, 0xffe00000\nv_mov_b32 v2, 0\n" + "\n".join(f"v_accvgpr_write_b32 a{r}, v2" for r in range(96,224))
qk1 = lambda: [f"v_mfma_f32_32x32x16_bf16 v[{64+16*(u%2)}:{79+16*(u%2)}], a[{4*(u//2)}:{4*(u//2)+3}], v[{160+8*(u%2)}:{163+8*(u%2)}], 0" for u in range(32)]
qk1c = lambda: [f"v_mfma_f32_32x32x16_bf16 v[{64+16*(u%2)}:{79+16*(u%2)}], a[{4*(u//2)}:{4*(u//2)+3}], v[{160+8*(u%2)}:{163+8*(u%2)}], v[{64+16*(u%2)}:{79+16*(u%2)}]" for u in range(32)]
qk2 = lambda: [f"v_mfma_f32_32x32x8_bf16 v[{64+16*(u%2)}:{79+16*(u%2)}], a[{64+2*(u//2)}:{65+2*(u//2)}], v[{164+8*(u%2)}:{165+8*(u%2)}], v[{96+16*(u%2)}:{111+16*(u%2)}]" for u in range(32)]
def qk12():
    o=[]
    for u in range(16):
        o += [qk1()[u], f"v_mfma_f32_32x32x8_bf16 v[{64+16*(u%2)}:{79+16*(u%2)}], a[{64+2*(u//2)}:{65+2*(u//2)}], v[{164+8*(u%2)}:{165+8*(u%2)}], v[{64+16*(u%2)}:{79+16*(u%2)}]"]
    return o
pv = lambda: [f"v_mfma_f32_32x32x16_bf16 v[{128+16*((u//2)%2)}:{143+16*((u//2)%2)}], a[{96+4*u}:{99+4*u}], v[{192+4*(u%16)}:{195+4*(u%16)}], v[{128+16*((u//2)%2)}:{143+16*((u//2)%2)}]" for u in range(32)]
pvsw = lambda: [f"v_mfma_f32_32x32x16_bf16 v[{128+16*((u//2)%2)}:{143+16*((u//2)%2)}], v[{192+4*(u%16)}:{195+4*(u%16)}], a[{96+4*u}:{99+4*u}], v[{128+16*((u//2)%2)}:{143+16*((u//2)%2)}]" for u in range(32)]
m16 = lambda: [f"v_mfma_f32_16x16x32_bf16 v[{64+4*(u%8)}:{67+4*(u%8)}], a[{4*(u%56)}:{4*(u%56)+3}], v[{160+4*(u%4)}:{163+4*(u%4)}], 0" for u in range(64)]
z16 = "s_mov_b32 exec_lo, 0\ns_mov_b32 exec_hi, 0xffff0000\nv_mov_b32 v2, 0\n" + "\n".join(f"v_accvgpr_write_b32 a{r}, v2" for r in range(0,224)) + "\n" + "\n".join(f"v_mov_b32 v{r}, 0" for r in range(160,176)) + "\ns_mov_b32 exec_hi, 0xffff\n" + "\n".join(f"v_accvgpr_write_b32 a{r}, v2" for r in range(0,224) if r%4>=2) + "\n" + "\n".join(f"v_mov_b32 v{r}, 0" for r in range(160,176) if r%4>=2)
mk = lambda fa, fb: (lambda: [f"v_mfma_f32_32x32x16_bf16 v[{64+16*(u%2)}:{79+16*(u%2)}], a[{4*fa(u)}:{4*fa(u)+3}], a[{128+4*fb(u)}:{131+4*fb(u)}], 0" for u in range(32)])
body("distinctAB", mk(lambda u: u, lambda u: u%16), 32, 24)
body("pairA", mk(lambda u: u//2, lambda u: u%16), 32, 24)
body("pairB", mk(lambda u: u, lambda u: (u//2)%16), 32, 24)
body("constA", mk(lambda u: 0, lambda u: u%16), 32, 24)
body("constB", mk(lambda u: u, lambda u: 0), 32, 24)
body("constAB", mk(lambda u: 0, lambda u: 0), 32, 24)
co = build([k[:4] for k in K], "mb14b")
if ON_GPU:
    import torch
    m = Mod(co)
    out = DeviceBuffer(0x100000)
    vals = torch.cat([(torch.randn(0x80000)*1.3), torch.exp2(torch.randn(0x80000)*8 - 30)]).to(torch.bfloat16)
    inp = DeviceBuffer.from_numpy(vals.view(torch.int16).numpy())
    big = torch.empty(1<<26, dtype=torch.uint8, device="cuda")
    for rnd in range(2):
      for (n,b,v,a,cnt) in K:
        r=[]
        for rep in range(7):
            big.fill_(rep)
            m.launch(n, (256,1,1), (256,1,1), [out.ptr, inp.ptr, 0, 0], lds=100*1024); sync()
            o = out.to_numpy(np.uint32, (256,4,2)).astype(np.float64)
            r.append((np.median(o[:,:,0])*10, np.median(o[:,:,1])))
        r=np.array(r[2:])
        print(f"{n:14s} ns per 32-cycle slot {np.median(r[:,0])/cnt:6.2f} clk {np.median(r[:,1]/r[:,0]):.3f}")
```
